```python
import torch

def _softmax(x, axis=-1):
    return torch.softmax(x, dim=axis)
def _gelu(x):
    return torch.nn.functional.gelu(x, approximate="tanh")
def _silu(x):
    return torch.nn.functional.silu(x)
def _sigmoid(x):
    return torch.sigmoid(x)
def _layernorm(x, axis=-1, eps=1e-5):
    m = x.mean(dim=axis, keepdim=True)
    v = x.var(dim=axis, keepdim=True, unbiased=False)
    return (x - m) / torch.sqrt(v + eps)
def _scatter_add(tgt, idx, src, axis=0):
    return tgt.clone().index_add_(axis, idx, src)
def _segment_sum(src, seg, n):
    out = torch.zeros((n,) + src.shape[1:], dtype=src.dtype)
    return out.index_add_(0, seg, src)
def _pad(x, pw):
    flat = tuple(v for pair in reversed(pw) for v in pair)
    return torch.nn.functional.pad(x, flat)

kernel_name = 'recurrent_scan__softmax_full_mha__glu_gated_glu__prompt'

def setup_inputs():

    _w = (lambda a: (lambda t: t.to(torch.bfloat16) if t.is_floating_point() else t)(torch.as_tensor(a)))
    def _A_setup():
        B, S, D = 1, 2048, 640
        return {
            "x": _w((lambda *s: torch.randn(*s, dtype=torch.bfloat16) * 0.05)(B, S, D)),
            "wqkv": _w((lambda *s: torch.randn(*s, dtype=torch.bfloat16) * 0.05)(D, 3 * D)),
            "wo": _w((lambda *s: torch.randn(*s, dtype=torch.bfloat16) * 0.05)(D, D)),
        }
    _A_in = _A_setup()

    def _B_setup():
        B, S, D, F = 1, 2048, 640, 1728
        return {
            "x": _w((lambda *s: torch.randn(*s, dtype=torch.bfloat16) * 0.05)(B, S, D)),
            "w_gate": _w((lambda *s: torch.randn(*s, dtype=torch.bfloat16) * 0.05)(D, F)),
            "w_up": _w((lambda *s: torch.randn(*s, dtype=torch.bfloat16) * 0.05)(D, F)),
            "w_down": _w((lambda *s: torch.randn(*s, dtype=torch.bfloat16) * 0.05)(F, D)),
        }
    _B_in = _B_setup()

    return {
        "A_x": _A_in["x"],
        "A_wqkv": _A_in["wqkv"],
        "A_wo": _A_in["wo"],
        "B_x": _B_in["x"],
        "B_w_gate": _B_in["w_gate"],
        "B_w_up": _B_in["w_up"],
        "B_w_down": _B_in["w_down"],
    }

def reference(A_x, A_wqkv, A_wo, B_x, B_w_gate, B_w_up, B_w_down):
    def _A_ref(x, wqkv, wo):
        B, S, D = x.shape
        H = 32; Dh = D // H
        qkv = (lambda x, *d: x.permute(*d))((x @ wqkv).reshape(B, S, 3, H, Dh), 2, 0, 3, 1, 4)
        q, k, v = qkv[0], qkv[1], qkv[2]
        scale = Dh ** -0.5
        scores = torch.einsum("bhqd,bhkd->bhqk", q, k) * scale
        p = _softmax(scores, axis=-1)
        o = torch.einsum("bhqk,bhkd->bhqd", p, v)
        return (lambda x, *d: x.permute(*d))(o, 0, 2, 1, 3).reshape(B, S, D) @ wo

    def _B_ref(x, w_gate, w_up, w_down):
        g = torch.einsum("bsd,df->bsf", x, w_gate)
        u = torch.einsum("bsd,df->bsf", x, w_up)
        h = _sigmoid(g) * u
        return torch.einsum("bsf,fd->bsd", h, w_down)

    x = A_x
    xn = _layernorm(x, axis=-1)
    s = _A_ref(xn, A_wqkv, A_wo)
    g = _silu(_B_ref(xn, B_w_gate, B_w_up, B_w_down))
    return x + s * g
```

```python
class Asm:
    def __init__(self):
        self.lines = []
        self.uid = 0
    def __call__(self, s=""):
        for l in s.split("\n"):
            l = l.rstrip()
            if l.strip() == "":
                continue
            if l.strip().endswith(":") or l.startswith("."):
                self.lines.append(l.strip())
            else:
                self.lines.append("    " + l.strip())
    def label(self, base):
        self.uid += 1
        return f"L_{base}_{self.uid}"
    def text(self):
        return "\n".join(self.lines) + "\n"

def vr(a, n=1):
    return f"v{a}" if n == 1 else f"v[{a}:{a+n-1}]"
def sr(a, n=1):
    return f"s{a}" if n == 1 else f"s[{a}:{a+n-1}]"

def kernel_desc(name, vgpr, sgpr=102, accum=None):
    if accum is None:
        accum = min(256, (vgpr + 3) // 4 * 4)
    return f""".p2align 6
.amdhsa_kernel {name}
  .amdhsa_next_free_vgpr {vgpr}
  .amdhsa_next_free_sgpr {sgpr}
  .amdhsa_accum_offset {accum}
  .amdhsa_group_segment_fixed_size 0
  .amdhsa_kernarg_size 80
  .amdhsa_user_sgpr_count 2
  .amdhsa_user_sgpr_kernarg_segment_ptr 1
  .amdhsa_system_sgpr_workgroup_id_x 1
  .amdhsa_float_denorm_mode_32 3
  .amdhsa_float_denorm_mode_16_64 3
.end_amdhsa_kernel
"""

def srd(a, s, ptr_s, nbytes, add_const=0):
    if add_const:
        a(f"s_add_u32 s{s}, s{ptr_s}, {add_const}")
        a(f"s_addc_u32 s{s+1}, s{ptr_s+1}, 0")
    else:
        a(f"s_mov_b32 s{s}, s{ptr_s}")
        a(f"s_mov_b32 s{s+1}, s{ptr_s+1}")
    a(f"s_and_b32 s{s+1}, s{s+1}, 0xffff")
    a(f"s_mov_b32 s{s+2}, {nbytes}")
    a(f"s_mov_b32 s{s+3}, 0x00020000")
```

```python
import sys
from asmlib import *

NAME = "recurrent_scan__softmax_full_mha__glu_gated_glu__prompt"
KA_X, KA_WQKV, KA_WO, KA_BX, KA_WG, KA_WU, KA_WD, KA_OUT, KA_DBG, KA_WS = 0, 8, 16, 24, 32, 40, 48, 56, 64, 72
S, D, F, H, DH = 2048, 640, 1728, 32, 20
XN_OFF = 0
QF_OFF = 0x280000
KV_OFF = 0x580000
H_OFF = 0xB80000
O_OFF = 0x1240000
G_OFF = 0x14C0000
WS_USED = 0x1740000
QHS = 64 * 1536
KVHS = 64 * 3072
LOG2E = 1.4426950408889634
QSCALE = (DH ** -0.5) * LOG2E

import struct
def f32(x):
    return "0x%08x" % struct.unpack("<I", struct.pack("<f", x))[0]

def k_ln(a):
    a("ln_kernel:")
    a("s_cmp_ge_u32 s2, 128")
    a("s_cbranch_scc1 L_ln_done")
    a(f"s_load_dwordx2 s[4:5], s[0:1], {KA_X}")
    a(f"s_load_dwordx2 s[6:7], s[0:1], {KA_WS}")
    a("v_and_b32 v1, 63, v0")
    a("v_lshrrev_b32 v2, 6, v0")
    a("v_lshrrev_b32 v3, 4, v1")
    a("v_lshl_add_u32 v2, v2, 2, v3")
    a("s_lshl_b32 s3, s2, 4")
    a("v_add_u32 v2, s3, v2")
    a("v_mul_u32_u24 v2, 1280, v2")
    a("v_and_b32 v3, 15, v1")
    a("v_lshl_add_u32 v2, v3, 4, v2")
    a("s_waitcnt lgkmcnt(0)")
    srd(a, 8, 4, S * D * 2)
    srd(a, 12, 6, S * D * 2, XN_OFF)
    for t in range(5):
        a(f"buffer_load_dwordx4 v[{4+4*t}:{7+4*t}], v2, s[8:11], 0 offen offset:{256*t}")
    a("s_waitcnt vmcnt(0)")
    for i in range(20):
        a(f"v_lshlrev_b32 v{24+2*i}, 16, v{4+i}")
        a(f"v_and_b32 v{25+2*i}, 0xffff0000, v{4+i}")
    a("v_add_f32 v64, v24, v25")
    for i in range(2, 40):
        a(f"v_add_f32 v64, v64, v{24+i}")
    def red(r):
        for sh in (8, 4, 2, 1):
            a("s_nop 1")
            a(f"v_add_f32_dpp v{r}, v{r}, v{r} row_ror:{sh} row_mask:0xf bank_mask:0xf")
    red(64)
    a(f"v_mul_f32 v64, {f32(1.0/640)}, v64")
    for i in range(40):
        a(f"v_sub_f32 v{24+i}, v{24+i}, v64")
    a("v_mul_f32 v65, v24, v24")
    for i in range(1, 40):
        a(f"v_fmac_f32 v65, v{24+i}, v{24+i}")
    red(65)
    a(f"v_mov_b32 v66, {f32(1e-5)}")
    a(f"v_fmac_f32 v66, {f32(1.0/640)}, v65")
    a("v_rsq_f32 v66, v66")
    a("s_nop 0")
    for i in range(40):
        a(f"v_mul_f32 v{24+i}, v{24+i}, v66")
    for i in range(20):
        a(f"v_cvt_pk_bf16_f32 v{4+i}, v{24+2*i}, v{25+2*i}")
    for t in range(5):
        a(f"buffer_store_dwordx4 v[{4+4*t}:{7+4*t}], v2, s[12:15], 0 offen offset:{256*t}")
    a("s_waitcnt vmcnt(0)")
    a("L_ln_done:")
    a("s_endpgm")

class G:
    vAd, vBd = 2, 3
    vAr = 4
    vBr = 8
    X, Y = 32, 48
    ACC = 64
    sA_srd, sB0_srd, sB1_srd = 4, 8, 12
    sA, sB0, sB1, sLW, sCnt, sT = 20, 21, 22, 23, 24, 25
    sW, sWm, sWn = 26, 27, 28

def gemm_setup_lane(a, MU):
    g = G
    a("v_lshrrev_b32 v1, 6, v0")
    a("s_nop 0")
    a(f"v_readfirstlane_b32 s{g.sW}, v1")
    a("v_and_b32 v1, 63, v0")
    a(f"s_lshr_b32 s{g.sWm}, s{g.sW}, 1")
    a(f"s_and_b32 s{g.sWn}, s{g.sW}, 1")
    a(f"s_lshl_b32 s{g.sLW}, s{g.sW}, 10")
    a("v_and_b32 v10, 31, v1")
    a("v_lshrrev_b32 v11, 5, v1")
    a("v_bfe_u32 v12, v10, 1, 3")
    a("v_xor_b32 v12, v12, v11")
    a(f"s_mul_i32 s{g.sT}, s{g.sWm}, {32*MU}")
    a(f"v_add_u32 v13, s{g.sT}, v10")
    a("v_lshlrev_b32 v13, 7, v13")
    for s in range(4):
        a(f"v_xor_b32 v14, {2*s}, v12")
        a(f"v_lshl_add_u32 v{g.vAr+s}, v14, 4, v13")
    a("v_lshrrev_b32 v10, 4, v1")
    a("v_and_b32 v11, 1, v10")
    a("v_lshrrev_b32 v10, 1, v10")
    a("v_and_b32 v12, 15, v1")
    a("v_lshrrev_b32 v13, 2, v12")
    a("v_lshl_add_u32 v13, v10, 3, v13")
    a("v_lshlrev_b32 v13, 7, v13")
    a("v_bfe_u32 v14, v12, 1, 1")
    a("v_lshl_add_u32 v14, v11, 1, v14")
    a(f"s_lshl_b32 s{g.sT}, s{g.sWn}, 2")
    a(f"v_add_u32 v14, s{g.sT}, v14")
    a("v_bfe_u32 v15, v12, 3, 1")
    a("v_lshlrev_b32 v15, 2, v15")
    a("v_xor_b32 v14, v14, v15")
    a("v_lshl_add_u32 v13, v14, 4, v13")
    a("v_and_b32 v15, 1, v12")
    a(f"v_lshl_add_u32 v{g.vBr}, v15, 3, v13")

def gemm_setup_dma(a, strideA, strideB):
    g = G
    a("v_lshrrev_b32 v10, 3, v1")
    a(f"s_lshl_b32 s{g.sT}, s{g.sW}, 3")
    a(f"v_add_u32 v10, s{g.sT}, v10")
    a("v_lshrrev_b32 v11, 4, v1")
    a(f"s_lshl_b32 s{g.sT}, s{g.sWn}, 2")
    a(f"v_add_u32 v12, s{g.sT}, v11")
    a("v_and_b32 v13, 7, v1")
    a("v_xor_b32 v12, v12, v13")
    a("v_lshlrev_b32 v12, 4, v12")
    a(f"s_mov_b32 s{g.sT}, {strideA}")
    a(f"v_mad_u32_u24 v{g.vAd}, v10, s{g.sT}, v12")
    a("v_and_b32 v11, 1, v11")
    a("v_lshlrev_b32 v11, 2, v11")
    a("v_xor_b32 v12, v11, v13")
    a("v_lshlrev_b32 v12, 4, v12")
    a(f"s_mov_b32 s{g.sT}, {strideB}")
    a(f"v_mad_u32_u24 v{g.vBd}, v10, s{g.sT}, v12")

def gemm_dma(a, MU, buf, strideA, strideB):
    g = G
    Asz = 64 * MU * 128
    BUF = Asz + 16384
    for t in range(2 * MU):
        a(f"s_add_u32 m0, s{g.sLW}, {buf*BUF + t*4096}")
        if t == 0:
            a("s_nop 0")
            a(f"buffer_load_dwordx4 v{g.vAd}, s[{g.sA_srd}:{g.sA_srd+3}], s{g.sA} offen lds")
        else:
            a(f"s_add_u32 s{g.sT}, s{g.sA}, {t*32*strideA}")
            a(f"buffer_load_dwordx4 v{g.vAd}, s[{g.sA_srd}:{g.sA_srd+3}], s{g.sT} offen lds")
    for t in range(4):
        p, hh = t >> 1, t & 1
        srdn = g.sB0_srd if p == 0 else g.sB1_srd
        so = g.sB0 if p == 0 else g.sB1
        a(f"s_add_u32 m0, s{g.sLW}, {buf*BUF + Asz + p*8192 + hh*4096}")
        if hh == 0:
            a("s_nop 0")
            a(f"buffer_load_dwordx4 v{g.vBd}, s[{srdn}:{srdn+3}], s{so} offen lds")
        else:
            a(f"s_add_u32 s{g.sT}, s{so}, {32*strideB}")
            a(f"buffer_load_dwordx4 v{g.vBd}, s[{srdn}:{srdn+3}], s{g.sT} offen lds")
    a(f"s_add_u32 s{g.sA}, s{g.sA}, 128")
    a(f"s_add_u32 s{g.sB0}, s{g.sB0}, {64*strideB}")
    a(f"s_add_u32 s{g.sB1}, s{g.sB1}, {64*strideB}")

def gemm_reads(a, MU, buf, s, dst):
    g = G
    Asz = 64 * MU * 128
    BUF = Asz + 16384
    for u in range(MU):
        a(f"ds_read_b128 v[{dst+4*u}:{dst+4*u+3}], v{g.vAr+s} offset:{buf*BUF + u*4096}")
    for v in range(2):
        for t in range(2):
            r = dst + 8 + 4*v + 2*t
            a(f"ds_read_b64_tr_b16 v[{r}:{r+1}], v{g.vBr} offset:{buf*BUF + Asz + v*8192 + (16*s+4*t)*128}")

def gemm_mfma(a, MU, src, transposed):
    g = G
    for u in range(MU):
        for v in range(2):
            acc = g.ACC + 16 * (2*u + v)
            A = f"v[{src+4*u}:{src+4*u+3}]"
            B = f"v[{src+8+4*v}:{src+8+4*v+3}]"
            x, y = (B, A) if transposed else (A, B)
            a(f"v_mfma_f32_32x32x16_bf16 v[{acc}:{acc+15}], {x}, {y}, v[{acc}:{acc+15}]")

def gemm_stage(a, MU, n, has_next, has_dma, transposed, strideA, strideB):
    g = G
    buf = n & 1
    nr = MU + 4
    gemm_reads(a, MU, buf, 1, g.Y)
    a(f"s_waitcnt lgkmcnt({nr})")
    gemm_mfma(a, MU, g.X, transposed)
    gemm_reads(a, MU, buf, 2, g.X)
    a(f"s_waitcnt lgkmcnt({nr})")
    gemm_mfma(a, MU, g.Y, transposed)
    gemm_reads(a, MU, buf, 3, g.Y)
    a(f"s_waitcnt lgkmcnt({nr})")
    gemm_mfma(a, MU, g.X, transposed)
    a("s_waitcnt vmcnt(0) lgkmcnt(0)")
    if has_next:
        a("s_barrier")
        if has_dma:
            gemm_dma(a, MU, buf, strideA, strideB)
        gemm_reads(a, MU, buf ^ 1, 0, g.X)
    gemm_mfma(a, MU, g.Y, transposed)
    if has_next:
        a(f"s_waitcnt lgkmcnt(0)")

def gemm_main(a, MU, nst, transposed, strideA, strideB, tag):
    g = G
    ndma = 2 * MU + 4
    gemm_dma(a, MU, 0, strideA, strideB)
    gemm_dma(a, MU, 1, strideA, strideB)
    for r in range(16 * 2 * MU):
        a(f"v_mov_b32 v{g.ACC+r}, 0")
    a(f"s_waitcnt vmcnt({ndma})")
    a("s_barrier")
    gemm_reads(a, MU, 0, 0, g.X)
    a("s_waitcnt lgkmcnt(0)")
    if nst % 2 == 0:
        npairs = (nst - 2) // 2
    else:
        npairs = (nst - 3) // 2
    if npairs > 0:
        a(f"s_mov_b32 s{g.sCnt}, {npairs}")
        L = a.label(tag + "_loop")
        a(f"{L}:")
        gemm_stage(a, MU, 0, True, True, transposed, strideA, strideB)
        gemm_stage(a, MU, 1, True, True, transposed, strideA, strideB)
        a(f"s_sub_u32 s{g.sCnt}, s{g.sCnt}, 1")
        a(f"s_cmp_lg_u32 s{g.sCnt}, 0")
        a(f"s_cbranch_scc1 {L}")
    if nst % 2 == 0:
        gemm_stage(a, MU, 0, True, False, transposed, strideA, strideB)
        gemm_stage(a, MU, 1, False, False, transposed, strideA, strideB)
    else:
        gemm_stage(a, MU, 0, True, True, transposed, strideA, strideB)
        gemm_stage(a, MU, 1, True, False, transposed, strideA, strideB)
        gemm_stage(a, MU, 0, False, False, transposed, strideA, strideB)
    a("s_nop 15")

def k_gemm1(a):
    g = G
    a("gemm1_kernel:")
    a("s_cmp_ge_u32 s2, 672")
    a("s_cbranch_scc1 L_g1_done")
    a(f"s_load_dwordx2 s[30:31], s[0:1], {KA_WS}")
    a(f"s_load_dwordx2 s[32:33], s[0:1], {KA_WQKV}")
    a(f"s_load_dwordx2 s[34:35], s[0:1], {KA_WG}")
    a(f"s_load_dwordx2 s[36:37], s[0:1], {KA_WU}")
    gemm_setup_lane(a, 2)
    a("s_and_b32 s40, s2, 15")
    a("s_lshr_b32 s41, s2, 4")
    a("s_waitcnt lgkmcnt(0)")
    srd(a, g.sA_srd, 30, S * D * 2, XN_OFF)
    a(f"s_mul_i32 s{g.sA}, s40, {128*1280}")
    a("s_cmp_ge_u32 s41, 15")
    a("s_cbranch_scc1 L_g1_h")
    srd(a, g.sB0_srd, 32, D * 3 * D * 2)
    srd(a, g.sB1_srd, 32, D * 3 * D * 2)
    a(f"s_lshl_b32 s{g.sB0}, s41, 8")
    a(f"s_add_u32 s{g.sB1}, s{g.sB0}, 128")
    gemm_setup_dma(a, 1280, 3840)
    a("s_cmp_ge_u32 s41, 10")
    a("s_cbranch_scc1 L_g1_v")
    gemm_main(a, 2, 10, True, 1280, 3840, "qk")
    a("s_cmp_ge_u32 s41, 5")
    a("s_cselect_b32 s42, 1, 0")
    a("s_mul_i32 s43, s42, 5")
    a("s_sub_u32 s43, s41, s43")
    a(f"s_mov_b32 s44, {QF_OFF}")
    a(f"s_mov_b32 s45, {KV_OFF}")
    a("s_cmp_eq_u32 s42, 1")
    a("s_cselect_b32 s44, s45, s44")
    a("s_add_u32 s16, s30, s44")
    a("s_addc_u32 s17, s31, 0")
    a("s_and_b32 s17, s17, 0xffff")
    a(f"s_mov_b32 s18, {KVHS*32}")
    a("s_mov_b32 s19, 0x00020000")
    a("s_cmp_eq_u32 s42, 1")
    a(f"s_mov_b32 s46, {QHS}")
    a(f"s_mov_b32 s47, {KVHS}")
    a("s_cselect_b32 s46, s47, s46")
    a("s_mov_b32 s47, 1536")
    a("s_cselect_b32 s47, 3072, s47")
    a(f"s_mov_b32 s48, {f32(QSCALE)}")
    a("s_cselect_b32 s48, 1.0, s48")
    a("s_cselect_b32 s49, 0x3f803f80, 0")
    a("s_cselect_b32 s50, 0x00003f80, 0")
    a("s_lshl_b32 s51, s40, 2")
    a(f"s_lshl_b32 s52, s{g.sWm}, 1")
    a("s_add_u32 s51, s51, s52")
    a("s_mul_i32 s51, s51, s47")
    a("s_lshl_b32 s52, s43, 5")
    a(f"s_lshl_b32 s53, s{g.sWn}, 3")
    a("s_add_u32 s52, s52, s53")
    a("v_lshrrev_b32 v10, 5, v1")
    a("v_add_u32 v10, s52, v10")
    a("v_and_b32 v11, 31, v1")
    a("v_lshlrev_b32 v11, 4, v11")
    a("v_add_u32 v11, s51, v11")
    a("v_mov_b32 v20, s49")
    a("v_mov_b32 v21, s50")
    for v in range(2):
        for aa in range(4):
            a(f"v_add_u32 v12, {16*v + 2*aa}, v10")
            a("v_mul_u32_u24 v13, 205, v12")
            a("v_lshrrev_b32 v13, 10, v13")
            a("v_mul_u32_u24 v14, 5, v13")
            a("v_sub_u32 v14, v12, v14")
            a("v_mul_lo_u32 v15, v13, s46")
            a("v_add_u32 v15, v15, v11")
            a("v_lshrrev_b32 v16, 1, v14")
            a("v_lshl_add_u32 v15, v16, 9, v15")
            a("v_and_b32 v16, 1, v14")
            a("v_lshl_add_u32 v15, v16, 3, v15")
            a("v_cmp_eq_u32 vcc, 4, v14")
            a("v_add_u32 v17, 8, v15")
            a("v_mov_b32 v18, 0x7ffffff0")
            a("v_cndmask_b32 v17, v18, v17, vcc")
            for u in range(2):
                acc = g.ACC + 16 * (2*u + v) + 4*aa
                for b in range(4):
                    a(f"v_mul_f32 v{22+b}, s48, v{acc+b}")
                a("v_cvt_pk_bf16_f32 v26, v22, v23")
                a("v_cvt_pk_bf16_f32 v27, v24, v25")
                if u == 0:
                    a("buffer_store_dwordx2 v[26:27], v15, s[16:19], 0 offen")
                    a("buffer_store_dwordx2 v[20:21], v17, s[16:19], 0 offen")
                else:
                    a("buffer_store_dwordx2 v[26:27], v15, s[16:19], s47 offen")
                    a("buffer_store_dwordx2 v[20:21], v17, s[16:19], s47 offen")
                a("s_nop 0")
    a("s_branch L_g1_end")
    a("L_g1_v:")
    gemm_main(a, 2, 10, False, 1280, 3840, "v")
    a("s_sub_u32 s43, s41, 10")
    srd(a, 16, 30, KVHS*32 + 4096, KV_OFF)
    a("s_lshl_b32 s51, s40, 2")
    a(f"s_lshl_b32 s52, s{g.sWm}, 1")
    a("s_add_u32 s51, s51, s52")
    a("s_mul_i32 s51, s51, 3072")
    a("s_add_u32 s51, s51, 1536")
    a("s_lshl_b32 s52, s43, 7")
    a(f"s_lshl_b32 s53, s{g.sWn}, 5")
    a("s_add_u32 s52, s52, s53")
    a("v_and_b32 v10, 31, v1")
    a("v_add_u32 v10, s52, v10")
    a("v_lshrrev_b32 v11, 5, v1")
    a("v_mul_u32_u24 v11, 384, v11")
    a("v_add_u32 v11, s51, v11")
    a("v_mov_b32 v20, 0x3f803f80")
    a("v_mov_b32 v21, 0x3f803f80")
    a("v_mov_b32 v22, 0x3f803f80")
    a("v_mov_b32 v23, 0x3f803f80")
    a(f"s_mov_b32 s46, {KVHS}")
    a("s_mov_b32 s47, 3072")
    a(f"s_mov_b32 s54, {3072+768}")
    a("s_mov_b32 s55, 768")
    for v in range(2):
        a(f"v_add_u32 v12, {64*v}, v10")
        a("v_mul_u32_u24 v13, 3277, v12")
        a("v_lshrrev_b32 v13, 16, v13")
        a("v_mul_u32_u24 v14, 20, v13")
        a("v_sub_u32 v14, v12, v14")
        a("v_mul_lo_u32 v15, v13, s46")
        a("v_add_u32 v15, v15, v11")
        a("v_lshl_add_u32 v15, v14, 4, v15")
        a("v_cmp_eq_u32 vcc, 19, v14")
        a("v_add_u32 v17, 16, v15")
        a("v_mov_b32 v18, 0x7ffffff0")
        a("v_cndmask_b32 v17, v18, v17, vcc")
        for u in range(2):
            acc = g.ACC + 16 * (2*u + v)
            for half in range(2):
                for j in range(4):
                    a(f"v_cvt_pk_bf16_f32 v{24+j}, v{acc+8*half+2*j}, v{acc+8*half+2*j+1}")
                so = ["0", "s55", "s47", "s54"][2*u + half]
                a(f"buffer_store_dwordx4 v[24:27], v15, s[16:19], {so} offen")
                a(f"buffer_store_dwordx4 v[20:23], v17, s[16:19], {so} offen")
                a("s_nop 1")
    a("s_branch L_g1_end")
    a("L_g1_h:")
    a("s_sub_u32 s41, s41, 15")
    srd(a, g.sB0_srd, 34, D * F * 2)
    srd(a, g.sB1_srd, 36, D * F * 2)
    a(f"s_lshl_b32 s{g.sB0}, s41, 7")
    a(f"s_mov_b32 s{g.sB1}, s{g.sB0}")
    gemm_setup_dma(a, 1280, 3456)
    gemm_main(a, 2, 10, True, 1280, 3456, "h")
    srd(a, 16, 30, S * F * 2, H_OFF)
    a("s_lshl_b32 s51, s40, 7")
    a(f"s_lshl_b32 s52, s{g.sWm}, 6")
    a("s_add_u32 s51, s51, s52")
    a("v_and_b32 v10, 31, v1")
    a("v_add_u32 v10, s51, v10")
    a("v_mul_u32_u24 v10, 3456, v10")
    a("s_lshl_b32 s52, s41, 7")
    a(f"s_lshl_b32 s53, s{g.sWn}, 6")
    a("s_add_u32 s52, s52, s53")
    a("v_lshrrev_b32 v11, 5, v1")
    a("v_lshlrev_b32 v11, 3, v11")
    a("v_add3_u32 v10, v10, v11, s52")
    a(f"s_mov_b32 s54, {32*3456}")
    for u in range(2):
        for aa in range(4):
            ga = g.ACC + 16 * (2*u + 0) + 4*aa
            ua = g.ACC + 16 * (2*u + 1) + 4*aa
            for b in range(4):
                a(f"v_mul_f32 v{22+b}, {f32(-LOG2E)}, v{ga+b}")
            for b in range(4):
                a(f"v_exp_f32 v{22+b}, v{22+b}")
            for b in range(4):
                a(f"v_add_f32 v{22+b}, 1.0, v{22+b}")
            for b in range(4):
                a(f"v_rcp_f32 v{22+b}, v{22+b}")
            a("s_nop 0")
            for b in range(4):
                a(f"v_mul_f32 v{22+b}, v{22+b}, v{ua+b}")
            a("v_cvt_pk_bf16_f32 v26, v22, v23")
            a("v_cvt_pk_bf16_f32 v27, v24, v25")
            so = "0" if u == 0 else "s54"
            a(f"buffer_store_dwordx2 v[26:27], v10, s[16:19], {so} offen offset:{16*aa}")
            a("s_nop 0")
    a("L_g1_end:")
    a("s_waitcnt vmcnt(0)")
    a("L_g1_done:")
    a("s_endpgm")

def k_attn(a):
    a("attn_kernel:")
    a("s_cmp_ge_u32 s2, 256")
    a("s_cbranch_scc1 L_at_done")
    a(f"s_load_dwordx2 s[30:31], s[0:1], {KA_WS}")
    a("v_lshrrev_b32 v1, 6, v0")
    a("s_nop 0")
    a("v_readfirstlane_b32 s26, v1")
    a("v_and_b32 v1, 63, v0")
    a("s_and_b32 s27, s26, 1")
    a("s_lshr_b32 s28, s26, 1")
    a("s_and_b32 s40, s2, 7")
    a("s_lshr_b32 s41, s2, 3")
    a("s_and_b32 s42, s41, 3")
    a("s_lshl_b32 s40, s40, 2")
    a("s_add_u32 s40, s40, s42")
    a("s_lshr_b32 s41, s41, 2")
    a("s_waitcnt lgkmcnt(0)")
    srd(a, 4, 30, QHS*32, QF_OFF)
    srd(a, 8, 30, KVHS*32 + 0x10000, KV_OFF)
    srd(a, 12, 30, S*D*2, O_OFF)
    Q1, Q2 = 2, 18
    O = 34
    S0, S1 = 98, 114
    P = 130
    KA = [138, 146]
    VA = [154, 162]
    vK1, vK2, vV = 170, 171, 172
    T = 174
    a("s_lshl_b32 s43, s41, 3")
    a("s_lshl_b32 s44, s27, 2")
    a("s_add_u32 s43, s43, s44")
    a("s_mul_i32 s44, s43, 1536")
    a(f"s_mul_i32 s45, s40, {QHS}")
    a("s_add_u32 s44, s44, s45")
    a(f"v_lshlrev_b32 v{vK1}, 4, v1")
    a(f"v_and_b32 v{T}, 31, v1")
    a(f"v_lshlrev_b32 v{T}, 4, v{T}")
    a(f"v_add_u32 v{vK2}, 1024, v{T}")
    a(f"v_lshrrev_b32 v{T+1}, 5, v1")
    a(f"v_mul_u32_u24 v{T+1}, 384, v{T+1}")
    a(f"v_add3_u32 v{vV}, v{T}, v{T+1}, 0")
    a(f"v_add_u32 v{vV}, 1536, v{vV}")
    for j in range(4):
        for r in range(4):
            a(f"v_mov_b32 v{Q2+4*j+r}, 0")
    for j in range(4):
        a(f"s_add_u32 s45, s44, {1536*j}")
        a(f"buffer_load_dwordx4 v[{Q1+4*j}:{Q1+4*j+3}], v{vK1}, s[4:7], s45 offen")
    a("s_mov_b64 s[46:47], exec")
    a("s_mov_b32 exec_hi, 0")
    for j in range(4):
        a(f"s_add_u32 s45, s44, {1536*j}")
        a(f"buffer_load_dwordx2 v[{Q2+4*j}:{Q2+4*j+1}], v{vK2}, s[4:7], s45 offen")
    a("s_mov_b64 exec, s[46:47]")
    a(f"s_mul_i32 s48, s40, {KVHS}")
    a(f"s_mul_i32 s49, s28, {32*3072}")
    a("s_add_u32 s48, s48, s49")
    a("s_mov_b32 s49, s48")
    def ldK(st):
        a(f"buffer_load_dwordx4 v[{KA[st]}:{KA[st]+3}], v{vK1}, s[8:11], s48 offen")
        a(f"buffer_load_dwordx4 v[{KA[st]+4}:{KA[st]+7}], v{vK2}, s[8:11], s48 offen")
        a("s_add_u32 s48, s48, 3072")
    def ldV(st):
        a(f"buffer_load_dwordx4 v[{VA[st]}:{VA[st]+3}], v{vV}, s[8:11], s49 offen")
        a(f"buffer_load_dwordx4 v[{VA[st]+4}:{VA[st]+7}], v{vV}, s[8:11], s49 offen offset:768")
        a("s_add_u32 s49, s49, 3072")
    ldK(0); ldV(0); ldK(1)
    for r in range(64):
        a(f"v_mov_b32 v{O+r}, 0")
    for r in range(8):
        a(f"v_mov_b32 v{P+r}, 0")
    SB = [S0, S1]
    def mf(d, x, y, c):
        a(f"v_mfma_f32_32x32x16_bf16 v[{d}:{d+15}], v[{x}:{x+3}], v[{y}:{y+3}], {c}")
    def qk1(Sn, kst, j): mf(Sn, KA[kst], Q1+4*j, "0")
    def qk2(Sn, kst, j): mf(Sn, KA[kst]+4, Q2+4*j, f"v[{Sn}:{Sn+15}]")
    def pv(j, vst, half): mf(O+16*j, VA[vst]+4*half, P+4*half, f"v[{O+16*j}:{O+16*j+15}]")
    a("s_waitcnt vmcnt(4)")
    qk1(S0, 0, 0); qk2(S0, 0, 0)
    a("s_nop 15")
    def step(kst, j, first_v_wait):
        Sc = SB[j & 1]; Sn = SB[(j + 1) & 1]
        e = lambda i: a(f"v_exp_f32 v{Sc+i}, v{Sc+i}")
        c = lambda i: a(f"v_cvt_pk_bf16_f32 v{P+i}, v{Sc+2*i}, v{Sc+2*i+1}")
        pj = (j - 1) & 3
        pvst = kst if j > 0 else kst ^ 1
        e(0); e(1)
        pv(pj, pvst, 1)
        if j == 0:
            ldV(kst ^ 1)
        e(2); e(3); c(0); c(1)
        e(4); e(5)
        nk = kst if j < 3 else kst ^ 1
        nj = (j + 1) & 3
        if j == 3:
            a("s_waitcnt vmcnt(2)")
        qk1(Sn, nk, nj)
        if j == 3:
            pass
        e(6); e(7); c(2); c(3)
        e(8); e(9)
        qk2(Sn, nk, nj)
        if j == 3:
            ldK(kst)
        e(10); e(11); c(4); c(5)
        e(12); e(13)
        if j == 0:
            a("s_waitcnt vmcnt(4)")
        pv(j, kst, 0)
        e(14); e(15); c(6); c(7)
    a("s_mov_b32 s50, 16")
    a(".p2align 6")
    a("L_at_loop:")
    for kst in range(2):
        for j in range(4):
            step(kst, j, None)
    a("s_sub_u32 s50, s50, 1")
    a("s_cmp_lg_u32 s50, 0")
    a("s_cbranch_scc1 L_at_loop")
    a("s_nop 1")
    pv(3, 1, 1)
    a("s_waitcnt vmcnt(0)")
    a("s_nop 15")
    a(f"v_lshlrev_b32 v{T}, 2, v1")
    a("s_mul_i32 s51, s26, 6144")
    a(f"v_add_u32 v{T+1}, s51, v{T}")
    a("s_xor_b32 s52, s26, 2")
    a("s_mul_i32 s52, s52, 6144")
    a(f"v_add_u32 v{T+2}, s52, v{T}")
    a("s_cmp_eq_u32 s28, 0")
    a("s_cbranch_scc0 L_at_kh1")
    for t2 in range(2):
        for r in range(12):
            a(f"ds_write_b32 v{T+1}, v{O+16*(2+t2)+r} offset:{(t2*12+r)*256}")
    a("s_waitcnt lgkmcnt(0)")
    a("s_barrier")
    for t2 in range(2):
        for r in range(12):
            a(f"ds_read_b32 v{S0+t2*12+r}, v{T+2} offset:{(t2*12+r)*256}")
    a("s_waitcnt lgkmcnt(0)")
    for t2 in range(2):
        for r in range(12):
            a(f"v_add_f32 v{O+16*t2+r}, v{O+16*t2+r}, v{S0+t2*12+r}")
    a("s_branch L_at_fin")
    a("L_at_kh1:")
    for t2 in range(2):
        for r in range(12):
            a(f"ds_write_b32 v{T+1}, v{O+16*t2+r} offset:{(t2*12+r)*256}")
    a("s_waitcnt lgkmcnt(0)")
    a("s_barrier")
    for t2 in range(2):
        for r in range(12):
            a(f"ds_read_b32 v{S0+t2*12+r}, v{T+2} offset:{(t2*12+r)*256}")
    a("s_waitcnt lgkmcnt(0)")
    for t2 in range(2):
        for r in range(12):
            a(f"v_add_f32 v{O+16*t2+r}, v{O+16*(2+t2)+r}, v{S0+t2*12+r}")
    a("L_at_fin:")
    a("s_lshl_b32 s51, s28, 1")
    a("s_add_u32 s51, s51, s43")
    a("s_lshl_b32 s51, s51, 5")
    a(f"v_and_b32 v{T}, 31, v1")
    a(f"v_add_u32 v{T}, s51, v{T}")
    a(f"v_mul_u32_u24 v{T}, 1280, v{T}")
    a(f"v_lshrrev_b32 v{T+1}, 5, v1")
    a(f"v_lshlrev_b32 v{T+2}, 3, v{T+1}")
    a("s_mul_i32 s52, s40, 40")
    a(f"v_add3_u32 v{T}, v{T}, v{T+2}, s52")
    a(f"v_cmp_eq_u32 vcc, 0, v{T+1}")
    a(f"v_add_u32 v{T+3}, 32, v{T}")
    a(f"v_mov_b32 v{T+4}, 0x7ffffff0")
    a(f"v_cndmask_b32 v{T+3}, v{T+4}, v{T+3}, vcc")
    a(f"s_mov_b32 s53, {32*1280}")
    for t2 in range(2):
        o = O + 16*t2
        a(f"v_mov_b32 v{T+5}, v{o+8}")
        a(f"v_mov_b32 v{T+6}, v{o+8}")
        a("s_nop 1")
        a(f"v_permlane32_swap_b32 v{T+5}, v{T+6}")
        a("s_nop 1")
        a(f"v_rcp_f32 v{T+6}, v{T+6}")
        a("s_nop 0")
        for r in range(12):
            a(f"v_mul_f32 v{o+r}, v{o+r}, v{T+6}")
        so = "0" if t2 == 0 else "s53"
        for gI in range(3):
            a(f"v_cvt_pk_bf16_f32 v{S1+2*gI}, v{o+4*gI}, v{o+4*gI+1}")
            a(f"v_cvt_pk_bf16_f32 v{S1+2*gI+1}, v{o+4*gI+2}, v{o+4*gI+3}")
        a(f"buffer_store_dwordx2 v[{S1}:{S1+1}], v{T}, s[12:15], {so} offen")
        a(f"buffer_store_dwordx2 v[{S1+2}:{S1+3}], v{T}, s[12:15], {so} offen offset:16")
        a(f"buffer_store_dwordx2 v[{S1+4}:{S1+5}], v{T+3}, s[12:15], {so} offen")
        a("s_nop 1")
    a("s_waitcnt vmcnt(0)")
    a("L_at_done:")
    a("s_endpgm")

def k_fin(a):
    g = G
    a("fin_kernel:")
    a("s_cmp_ge_u32 s2, 160")
    a("s_cbranch_scc1 L_fin_done")
    a(f"s_load_dwordx2 s[30:31], s[0:1], {KA_WS}")
    a(f"s_load_dwordx2 s[32:33], s[0:1], {KA_WD}")
    a(f"s_load_dwordx2 s[34:35], s[0:1], {KA_WO}")
    a(f"s_load_dwordx2 s[36:37], s[0:1], {KA_X}")
    a(f"s_load_dwordx2 s[38:39], s[0:1], {KA_OUT}")
    gemm_setup_lane(a, 1)
    a("s_and_b32 s40, s2, 31")
    a("s_lshr_b32 s41, s2, 5")
    a("s_waitcnt lgkmcnt(0)")
    srd(a, g.sA_srd, 30, S * F * 2, H_OFF)
    srd(a, g.sB0_srd, 32, F * D * 2)
    srd(a, g.sB1_srd, 32, F * D * 2)
    a(f"s_mul_i32 s{g.sA}, s40, {64*3456}")
    a(f"s_lshl_b32 s{g.sB0}, s41, 8")
    a(f"s_add_u32 s{g.sB1}, s{g.sB0}, 128")
    gemm_setup_dma(a, 3456, 1280)
    gemm_main(a, 1, 27, True, 3456, 1280, "dn")
    for r in range(32):
        z = g.ACC + r
        a(f"v_mul_f32 v10, {f32(-LOG2E)}, v{z}")
        a("v_exp_f32 v10, v10")
        a("s_nop 0")
        a("v_add_f32 v10, 1.0, v10")
        a("v_rcp_f32 v10, v10")
        a("s_nop 0")
        a(f"v_mul_f32 v{128+r}, v{z}, v10")
    a("s_barrier")
    srd(a, g.sA_srd, 30, S * D * 2, O_OFF)
    srd(a, g.sB0_srd, 34, D * D * 2)
    srd(a, g.sB1_srd, 34, D * D * 2)
    a(f"s_mul_i32 s{g.sA}, s40, {64*1280}")
    a(f"s_lshl_b32 s{g.sB0}, s41, 8")
    a(f"s_add_u32 s{g.sB1}, s{g.sB0}, 128")
    gemm_setup_dma(a, 1280, 1280)
    gemm_main(a, 1, 10, True, 1280, 1280, "wo")
    srd(a, 8, 36, S * D * 2)
    srd(a, 16, 38, S * D * 2)
    a("s_lshl_b32 s51, s40, 6")
    a(f"s_lshl_b32 s52, s{g.sWm}, 5")
    a("s_add_u32 s51, s51, s52")
    a("v_and_b32 v10, 31, v1")
    a("v_add_u32 v10, s51, v10")
    a("v_mul_u32_u24 v10, 1280, v10")
    a("s_lshl_b32 s52, s41, 8")
    a(f"s_lshl_b32 s53, s{g.sWn}, 6")
    a("s_add_u32 s52, s52, s53")
    a("v_lshrrev_b32 v11, 5, v1")
    a("v_lshlrev_b32 v11, 3, v11")
    a("v_add3_u32 v10, v10, v11, s52")
    for v in range(2):
        for aa in range(4):
            a(f"buffer_load_dwordx2 v[{32+2*(4*v+aa)}:{33+2*(4*v+aa)}], v10, s[8:11], 0 offen offset:{128*v+16*aa}")
    a("s_waitcnt vmcnt(0)")
    for v in range(2):
        for aa in range(4):
            xr = 32 + 2*(4*v+aa)
            acc = g.ACC + 16*v + 4*aa
            gg = 128 + 16*v + 4*aa
            a(f"v_lshlrev_b32 v12, 16, v{xr}")
            a(f"v_and_b32 v13, 0xffff0000, v{xr}")
            a(f"v_lshlrev_b32 v14, 16, v{xr+1}")
            a(f"v_and_b32 v15, 0xffff0000, v{xr+1}")
            for b in range(4):
                a(f"v_fmac_f32 v{12+b}, v{acc+b}, v{gg+b}")
            a("v_cvt_pk_bf16_f32 v16, v12, v13")
            a("v_cvt_pk_bf16_f32 v17, v14, v15")
            a(f"buffer_store_dwordx2 v[16:17], v10, s[16:19], 0 offen offset:{128*v+16*aa}")
            a("s_nop 0")
    a("s_waitcnt vmcnt(0)")
    a("L_fin_done:")
    a("s_endpgm")

def build():
    hdr = open("cdna_kernels/" + NAME + ".s.ref").read().split("; Override launch geometry")[0]
    out = hdr
    out += "; @launch kernel=ln_kernel grid=(128,1,1) block=(256,1,1) lds=0\n"
    out += "; @launch kernel=gemm1_kernel grid=(672,1,1) block=(256,1,1) lds=65536\n"
    out += "; @launch kernel=attn_kernel grid=(256,1,1) block=(256,1,1) lds=24576\n"
    out += "; @launch kernel=fin_kernel grid=(160,1,1) block=(256,1,1) lds=49152\n"
    out += '.amdgcn_target "amdgcn-amd-amdhsa--gfx950"\n.text\n'
    descs = ""
    for name, fn, vg in (("ln_kernel", k_ln, 72), ("gemm1_kernel", k_gemm1, 128), ("attn_kernel", k_attn, 192), ("fin_kernel", k_fin, 160)):
        a = Asm()
        a.uid = hash(name) % 1000 * 1000 if False else {"ln_kernel": 0, "gemm1_kernel": 1000, "attn_kernel": 2000, "fin_kernel": 3000}[name]
        fn(a)
        out += f".globl {name}\n.p2align 8\n.type {name},@function\n" + a.text()
        descs += kernel_desc(name, vg)
    out += '.section .rodata,"a"\n' + descs
    return out

if __name__ == "__main__":
    path = sys.argv[1] if len(sys.argv) > 1 else "cdna_kernels/" + NAME + ".s"
    open(path, "w").write(build())
    print("wrote", path)
```

```python
import sys, os, struct
from asmlib import *

NAME = "recurrent_scan__softmax_full_mha__glu_gated_glu__prompt"
KA_X, KA_WQKV, KA_WO, KA_BX, KA_WG, KA_WU, KA_WD, KA_OUT, KA_DBG, KA_WS = 0, 8, 16, 24, 32, 40, 48, 56, 64, 72
S, D, F, H, DH = 2048, 640, 1728, 32, 20
ST_OFF = 0
CS_OFF = 0x8000
CNT_OFF = 0x10000
ONES_OFF = 0x20000
Q4_OFF = 0x100000
K4_OFF = 0x380000
V_OFF = 0x600000
H4_OFF = 0x880000
O4_OFF = 0xF40000
WS_USED = 0x11C0000
GS = 16384
VHS = 64 * 1280
LOG2E = 1.4426950408889634
QSCALE = (DH ** -0.5) * LOG2E
C_KV, C_ST, C_CS, C_H, C_O, C_N = 0, 40, 168, 252, 268, 276
MULTI = int(os.environ.get("MULTI", "0"))
PROF = int(os.environ.get("PROF", "0"))
PROF_OFF = 0x1800000
SC = " sc1"

def f32(x):
    return "0x%08x" % struct.unpack("<I", struct.pack("<f", x))[0]

sX, sWQKV, sWO, sWG, sWU, sWD, sOUT, sDBG, sWS = 60, 62, 64, 66, 68, 70, 72, 74, 76
sCNT = 56

def stamp(a, idx):
    if not PROF: return
    a("s_memtime s[98:99]")
    a("s_waitcnt lgkmcnt(0)")
    a(f"s_mov_b32 s{80+idx}, s98")
def stamp_flush(a, n, wave_s):
    if not PROF: return
    a("s_memtime s[96:97]")
    a("s_waitcnt lgkmcnt(0)")
    a("s_mov_b32 s100, s96")
    a("s_memrealtime s[98:99]")
    a("s_waitcnt lgkmcnt(0)")
    a("s_lshl_b32 s96, s2, 2")
    a(f"s_add_u32 s96, s96, s{wave_s}")
    a("s_lshl_b32 s96, s96, 7")
    a(f"s_add_u32 s96, s96, {PROF_OFF}")
    a(f"s_add_u32 s94, s{sWS}, s96")
    a(f"s_addc_u32 s95, s{sWS+1}, 0")
    a("v_mov_b32 v250, 0")
    for i in range(n):
        a(f"v_mov_b32 v251, s{80+i}")
        a(f"global_store_dword v250, v251, s[94:95] offset:{4*i}")
    a("v_mov_b32 v251, s100")
    a("global_store_dword v250, v251, s[94:95] offset:56")
    a("v_mov_b32 v251, s98")
    a("global_store_dword v250, v251, s[94:95] offset:60")
    a("v_mov_b32 v251, s101")
    a("global_store_dword v250, v251, s[94:95] offset:64")
    a("s_getreg_b32 s96, hwreg(HW_REG_XCC_ID)")
    a("v_mov_b32 v251, s96")
    a("global_store_dword v250, v251, s[94:95] offset:68")
    a("s_waitcnt vmcnt(0)")

def load_ptrs(a):
    a(f"s_load_dwordx4 s[{sX}:{sX+3}], s[0:1], {KA_X}")
    a(f"s_load_dwordx2 s[{sWO}:{sWO+1}], s[0:1], {KA_WO}")
    a(f"s_load_dwordx4 s[68:71], s[0:1], {KA_WU}")
    a(f"s_load_dwordx2 s[{sWG}:{sWG+1}], s[0:1], {KA_WG}")
    a(f"s_load_dwordx4 s[72:75], s[0:1], {KA_OUT}")
    a(f"s_load_dwordx2 s[{sWS}:{sWS+1}], s[0:1], {KA_WS}")

def cnt_srd(a):
    srd(a, sCNT, sWS, C_N * 128, CNT_OFF)

def wait_ready(a, vt, st):
    if MULTI: return
    L = a.label("rdy"); Ld = a.label("rdyd")
    a(f"v_mov_b32 v{vt}, 0")
    a(f"s_mov_b32 s{st}, 0x40000")
    a(f"{L}:")
    a(f"global_load_dword v{vt+1}, v{vt}, s[{sDBG}:{sDBG+1}] sc1")
    a("s_waitcnt vmcnt(0)")
    a(f"v_readfirstlane_b32 s{st+1}, v{vt+1}")
    a(f"s_cmp_lg_u32 s{st+1}, 0")
    a(f"s_cbranch_scc1 {Ld}")
    a("s_sleep 2")
    a(f"s_sub_u32 s{st}, s{st}, 1")
    a(f"s_cmp_lg_u32 s{st}, 0")
    a(f"s_cbranch_scc1 {L}")
    a(f"{Ld}:")

def wait_counters(a, vaddr, vtgt, vt, st, nl):
    if MULTI: return
    L = a.label("wc"); Ld = a.label("wcd")
    a(f"s_mov_b64 s[{st+2}:{st+3}], exec")
    a(f"s_mov_b32 exec_lo, {(1<<nl)-1}")
    a("s_mov_b32 exec_hi, 0")
    a(f"s_mov_b32 s{st}, 0x40000")
    a(f"{L}:")
    a(f"buffer_load_dword v{vt}, v{vaddr}, s[{sCNT}:{sCNT+3}], 0 offen sc1")
    a("s_waitcnt vmcnt(0)")
    a(f"v_cmp_lt_u32 vcc, v{vt}, v{vtgt}")
    a("s_nop 4")
    a(f"s_cbranch_vccz {Ld}")
    a("s_sleep 2")
    a(f"s_sub_u32 s{st}, s{st}, 1")
    a(f"s_cmp_lg_u32 s{st}, 0")
    a(f"s_cbranch_scc1 {L}")
    a(f"{Ld}:")
    a(f"s_mov_b64 exec, s[{st+2}:{st+3}]")

def signal(a, wave_s, vaddr, vt, st, nl):
    if MULTI:
        return
    L = a.label("sg")
    a("s_waitcnt vmcnt(0)")
    a("s_barrier")
    a(f"s_cmp_lg_u32 s{wave_s}, 0")
    a(f"s_cbranch_scc1 {L}")
    a(f"s_mov_b64 s[{st}:{st+1}], exec")
    a(f"s_mov_b32 exec_lo, {(1<<nl)-1}")
    a("s_mov_b32 exec_hi, 0")
    a(f"v_mov_b32 v{vt}, 1")
    a(f"buffer_atomic_add v{vt}, v{vaddr}, s[{sCNT}:{sCNT+3}], 0 offen sc1")
    a(f"s_mov_b64 exec, s[{st}:{st+1}]")
    a(f"{L}:")

class G:
    vAd, vBd = 2, 3
    vAr, vArH = 4, 8
    vBr, vBrH = 12, 13
    T = 14
    X, Y = 32, 48
    ACC = 64
    sA_srd, sB0_srd, sB1_srd, sO_srd = 4, 8, 12, 16
    sA, sB0, sB1, sLW, sCnt, sT = 20, 21, 22, 23, 24, 25
    sAb, sAe, sBb, sBe = 36, 37, 38, 39
    sW, sWm, sWn = 26, 27, 28

def wave_ids(a):
    g = G
    a("v_lshrrev_b32 v1, 6, v0")
    a("s_nop 0")
    a(f"v_readfirstlane_b32 s{g.sW}, v1")
    a("v_and_b32 v1, 63, v0")
    a(f"s_lshr_b32 s{g.sWm}, s{g.sW}, 1")
    a(f"s_and_b32 s{g.sWn}, s{g.sW}, 1")
    a(f"s_lshl_b32 s{g.sLW}, s{g.sW}, 10")

def gemm_setup_reads(a, MU):
    g = G; t = g.T
    a(f"v_and_b32 v{t}, 31, v1")
    a(f"v_lshrrev_b32 v{t+1}, 5, v1")
    a(f"v_bfe_u32 v{t+2}, v{t}, 1, 3")
    a(f"v_xor_b32 v{t+2}, v{t+2}, v{t+1}")
    a(f"s_mul_i32 s{g.sT}, s{g.sWm}, {32*MU}")
    a(f"v_add_u32 v{t+3}, s{g.sT}, v{t}")
    a(f"v_lshlrev_b32 v{t+3}, 7, v{t+3}")
    for s in range(4):
        a(f"v_xor_b32 v{t+4}, {2*s}, v{t+2}")
        a(f"v_lshl_add_u32 v{g.vAr+s}, v{t+4}, 4, v{t+3}")
        a(f"v_add_u32 v{g.vArH+s}, 0x10000, v{g.vAr+s}")
    a(f"v_lshrrev_b32 v{t}, 4, v1")
    a(f"v_and_b32 v{t+1}, 1, v{t}")
    a(f"v_lshrrev_b32 v{t}, 1, v{t}")
    a(f"v_and_b32 v{t+2}, 15, v1")
    a(f"v_lshrrev_b32 v{t+3}, 2, v{t+2}")
    a(f"v_lshl_add_u32 v{t+3}, v{t}, 3, v{t+3}")
    a(f"v_lshlrev_b32 v{t+3}, 7, v{t+3}")
    a(f"v_bfe_u32 v{t+4}, v{t+2}, 1, 1")
    a(f"v_lshl_add_u32 v{t+4}, v{t+1}, 1, v{t+4}")
    a(f"s_lshl_b32 s{g.sT}, s{g.sWn}, 2")
    a(f"v_add_u32 v{t+4}, s{g.sT}, v{t+4}")
    a(f"v_bfe_u32 v{t+5}, v{t+2}, 3, 1")
    a(f"v_lshlrev_b32 v{t+5}, 2, v{t+5}")
    a(f"v_xor_b32 v{t+4}, v{t+4}, v{t+5}")
    a(f"v_lshl_add_u32 v{t+3}, v{t+4}, 4, v{t+3}")
    a(f"v_and_b32 v{t+5}, 1, v{t+2}")
    a(f"v_lshl_add_u32 v{g.vBr}, v{t+5}, 3, v{t+3}")
    a(f"v_add_u32 v{g.vBrH}, 0x10000, v{g.vBr}")

def gemm_setup_dma(a, strideA, strideB):
    g = G; t = g.T
    a(f"v_lshrrev_b32 v{t}, 3, v1")
    a(f"s_lshl_b32 s{g.sT}, s{g.sW}, 3")
    a(f"v_add_u32 v{t}, s{g.sT}, v{t}")
    a(f"v_lshrrev_b32 v{t+1}, 4, v1")
    a(f"s_lshl_b32 s{g.sT}, s{g.sWn}, 2")
    a(f"v_add_u32 v{t+2}, s{g.sT}, v{t+1}")
    a(f"v_and_b32 v{t+3}, 7, v1")
    a(f"v_xor_b32 v{t+2}, v{t+2}, v{t+3}")
    a(f"v_lshlrev_b32 v{t+2}, 4, v{t+2}")
    a(f"s_mov_b32 s{g.sT}, {strideA}")
    a(f"v_mad_u32_u24 v{g.vAd}, v{t}, s{g.sT}, v{t+2}")
    a(f"v_and_b32 v{t+1}, 1, v{t+1}")
    a(f"v_lshlrev_b32 v{t+1}, 2, v{t+1}")
    a(f"v_xor_b32 v{t+2}, v{t+1}, v{t+3}")
    a(f"v_lshlrev_b32 v{t+2}, 4, v{t+2}")
    a(f"s_mov_b32 s{g.sT}, {strideB}")
    a(f"v_mad_u32_u24 v{g.vBd}, v{t}, s{g.sT}, v{t+2}")

def gemm_setup_gm(a):
    g = G; t = g.T
    a(f"v_lshrrev_b32 v{t}, 5, v1")
    a(f"s_lshl_b32 s{g.sT}, s{g.sW}, 1")
    a(f"v_add_u32 v{t}, s{g.sT}, v{t}")
    a(f"v_lshlrev_b32 v{t}, 14, v{t}")
    a(f"v_and_b32 v{t+1}, 31, v1")
    a(f"v_lshl_add_u32 v{g.vAd}, v{t+1}, 4, v{t}")
    a(f"v_lshrrev_b32 v{t}, 5, v1")
    a(f"v_lshlrev_b32 v{t}, 10, v{t}")
    a(f"s_lshl_b32 s{g.sT}, s{g.sWm}, 5")
    a(f"v_add_u32 v{t+1}, s{g.sT}, v{t+1}")
    a(f"v_lshl_add_u32 v{g.vAr}, v{t+1}, 3, v{t}")

class Ring:
    def __init__(self, MU, nst, gm=False, dB1=128):
        self.MU, self.nst, self.gm, self.dB1 = MU, nst, gm, dB1
        self.pieces = []
        for n in range(nst):
            self.pieces.append(('A', n)); self.pieces.append(('B', n))
        if MU == 2:
            self.cap = 5
        else:
            self.cap = 6
    def base(self, kind, n):
        if self.MU == 2:
            q = 2*n + (kind == 'B')
            return (q % 5) * 16384
        return (n % 3) * 24576 + (8192 if kind == 'B' else 0)
    def ninstr(self, kind):
        return 2*self.MU if kind == 'A' else 4

def dma_instrs(ring, kind, n, strideA, strideB, scA):
    g = G; out = []
    base = ring.base(kind, n)
    if kind == 'A':
        nI = 2 if ring.gm else 2*ring.MU
        stepI = 8*GS if ring.gm else 32*strideA
        stepP = 16*GS if ring.gm else 128
        for t in range(nI):
            grp = [f"s_add_u32 m0, s{g.sLW}, {base + t*4096}",
                   f"s_add_u32 s{g.sT}, s{g.sA}, {t*stepI}",
                   f"buffer_load_dwordx4 v{g.vAd}, s[{g.sA_srd}:{g.sA_srd+3}], s{g.sT} offen{scA} lds"]
            if t == nI - 1:
                grp += [f"s_add_u32 s{g.sA}, s{g.sA}, {stepP}",
                        f"s_cmp_eq_u32 s{g.sA}, s{g.sAe}",
                        f"s_cselect_b32 s{g.sA}, s{g.sAb}, s{g.sA}"]
            out.append(grp)
    else:
        for t in range(4):
            p, hh = t >> 1, t & 1
            srdn = g.sB0_srd if p == 0 else g.sB1_srd
            grp = [f"s_add_u32 m0, s{g.sLW}, {base + p*8192 + hh*4096}",
                   f"s_add_u32 s{g.sT}, s{g.sB0}, {32*hh*strideB + p*ring.dB1}",
                   f"buffer_load_dwordx4 v{g.vBd}, s[{srdn}:{srdn+3}], s{g.sT} offen lds"]
            if t == 3:
                grp += [f"s_add_u32 s{g.sB0}, s{g.sB0}, {64*strideB}",
                        f"s_cmp_eq_u32 s{g.sB0}, s{g.sBe}",
                        f"s_cselect_b32 s{g.sB0}, s{g.sBb}, s{g.sB0}"]
            out.append(grp)
    return out

def rot_setup(a, nst, stepA, strideB, rot_s):
    g = G
    a(f"s_mov_b32 s{g.sAb}, s{g.sA}")
    a(f"s_add_u32 s{g.sAe}, s{g.sA}, {nst*stepA}")
    a(f"s_mul_i32 s{g.sT}, s{rot_s}, {stepA}")
    a(f"s_add_u32 s{g.sA}, s{g.sA}, s{g.sT}")
    a(f"s_mov_b32 s{g.sBb}, s{g.sB0}")
    a(f"s_add_u32 s{g.sBe}, s{g.sB0}, {nst*64*strideB}")
    a(f"s_mul_i32 s{g.sT}, s{rot_s}, {64*strideB}")
    a(f"s_add_u32 s{g.sB0}, s{g.sB0}, s{g.sT}")

def rot_value(a, dst, e_s, m1, m2, nst):
    a(f"s_lshr_b32 s{dst}, s{e_s}, 2")
    a(f"s_mul_i32 s{dst}, s{dst}, {m1}")
    a(f"s_and_b32 s{G.sT}, s{e_s}, 3")
    a(f"s_mul_i32 s{G.sT}, s{G.sT}, {m2}")
    a(f"s_add_u32 s{dst}, s{dst}, s{G.sT}")
    mg = (1 << 16) // nst + 1
    a(f"s_mul_i32 s{G.sT}, s{dst}, {mg}")
    a(f"s_lshr_b32 s{G.sT}, s{G.sT}, 16")
    a(f"s_mul_i32 s{G.sT}, s{G.sT}, {nst}")
    a(f"s_sub_u32 s{dst}, s{dst}, s{G.sT}")

def read_instrs(ring, n, s, dst):
    g = G; out = []
    MU = ring.MU
    ab = ring.base('A', n); bb = ring.base('B', n)
    if ring.gm:
        for t in range(2):
            out.append(f"ds_read_b64 v[{dst+2*t}:{dst+2*t+1}], v{g.vAr} offset:{ab + (4*s + t)*512}")
    for u in range(0 if ring.gm else MU):
        off = ab + u*4096
        reg = g.vAr + s
        if off >= 65536: off -= 65536; reg = g.vArH + s
        out.append(f"ds_read_b128 v[{dst+4*u}:{dst+4*u+3}], v{reg} offset:{off}")
    for v in range(2):
        for t in range(2):
            r = dst + 8 + 4*v + 2*t
            off = bb + v*8192 + (16*s + 4*t)*128
            reg = g.vBr
            if off >= 65536: off -= 65536; reg = g.vBrH
            out.append(f"ds_read_b64_tr_b16 v[{r}:{r+1}], v{reg} offset:{off}")
    return out

def mfma_instrs(MU, src, transposed, first=False):
    g = G; out = []
    for u in range(MU):
        for v in range(2):
            acc = g.ACC + 16*(2*u + v)
            A = f"v[{src+4*u}:{src+4*u+3}]"; B = f"v[{src+8+4*v}:{src+8+4*v+3}]"
            x, y = (B, A) if transposed else (A, B)
            c = "0" if first else f"v[{acc}:{acc+15}]"
            out.append(f"v_mfma_f32_32x32x16_bf16 v[{acc}:{acc+15}], {x}, {y}, {c}")
    return out

def emit_mixed(a, mf, groups):
    gi = 0
    per = -(-len(groups) // len(mf)) if groups else 0
    for m in mf:
        a(m)
        for _ in range(per):
            if gi < len(groups):
                for l in groups[gi]: a(l)
                gi += 1
    while gi < len(groups):
        for l in groups[gi]: a(l)
        gi += 1

def gemm_prologue_dma(a, ring, strideA, strideB, scA=""):
    for q in range(min(ring.cap, len(ring.pieces))):
        k, n = ring.pieces[q]
        for grp in dma_instrs(ring, k, n, strideA, strideB, scA):
            for l in grp: a(l)

def gemm_main(a, MU, nst, transposed, strideA, strideB, scA="", hook=None, prologue_done=False, stampbase=None, gm=False, extra=0, dB1=128):
    g = G
    ring = Ring(MU, nst, gm, dB1)
    P = ring.pieces
    issued = min(ring.cap, len(P))
    if not prologue_done:
        gemm_prologue_dma(a, ring, strideA, strideB, scA)
    nprol = issued
    def outstanding_after(need_upto, issued):
        n = sum(ring.ninstr(P[q][0]) for q in range(need_upto + 1, issued))
        if need_upto < nprol: n += extra
        return n
    a(f"s_waitcnt vmcnt({outstanding_after(1, issued)})")
    a("s_barrier")
    if stampbase is not None: stamp(a, stampbase)
    for l in read_instrs(ring, 0, 0, g.X): a(l)
    nr = (2 if gm else MU) + 4
    pending = []
    for n in range(nst):
        last = n == nst - 1
        if hook: hook(a, n, issued)
        sets = [g.X, g.Y, g.X, g.Y]
        for s in range(3):
            for l in read_instrs(ring, n, s + 1, sets[s + 1]): a(l)
            a(f"s_waitcnt lgkmcnt({nr})")
            k = len(pending) if s == 2 else min(len(pending), 2 if MU == 2 else 1)
            grp, pending = pending[:k], pending[k:]
            emit_mixed(a, mfma_instrs(MU, sets[s], transposed, first=(n == 0 and s == 0)), grp)
        assert not pending
        if not last:
            need = 2*(n + 1) + 1
            a(f"s_waitcnt vmcnt({outstanding_after(need, issued)}) lgkmcnt(0)")
            a("s_barrier")
            if stampbase is not None and os.environ.get("A1ST"): stamp(a, 4 + n)
            newp = []
            for q in range(issued, min(issued + 2, len(P))):
                newp += dma_instrs(ring, P[q][0], P[q][1], strideA, strideB, scA)
            issued = min(issued + 2, len(P))
            for l in read_instrs(ring, n + 1, 0, g.X): a(l)
            k = min(len(newp), 4 if MU == 2 else 2)
            grp, pending = newp[:k], newp[k:]
            emit_mixed(a, mfma_instrs(MU, g.Y, transposed), grp)
        else:
            a("s_waitcnt lgkmcnt(0)")
            emit_mixed(a, mfma_instrs(MU, g.Y, transposed), [])
    a("s_nop 15")

sIDX = 3
def prologue(a):
    if PROF:
        a("s_memrealtime s[98:99]")
        a("s_waitcnt lgkmcnt(0)")
        a("s_mov_b32 s101, s98")
        for i in range(1, 14): a(f"s_mov_b32 s{80+i}, 0")
    load_ptrs(a)
    wave_ids(a)
    a("s_waitcnt lgkmcnt(0)")
    cnt_srd(a)

def touch(a, srd_s, vaddr, soff, vd):
    a(f"buffer_load_dword v{vd}, v{vaddr}, s[{srd_s}:{srd_s+3}], {soff} offen")

def zero_counters(a):
    if MULTI: return
    L = a.label("zc")
    a("s_cmp_lg_u32 s2, 0")
    a(f"s_cbranch_scc1 {L}")
    a("v_lshlrev_b32 v14, 7, v0")
    a("v_mov_b32 v15, 0")
    a(f"buffer_store_dword v15, v14, s[{sCNT}:{sCNT+3}], 0 offen sc1")
    a("v_add_u32 v14, 0x8000, v14")
    a(f"buffer_store_dword v15, v14, s[{sCNT}:{sCNT+3}], 0 offen sc1")
    a("s_waitcnt vmcnt(0)")
    a("s_barrier")
    a("v_mov_b32 v14, 0")
    a("v_mov_b32 v15, 1")
    a("v_cmp_eq_u32 vcc, 0, v0")
    a("s_and_saveexec_b64 s[30:31], vcc")
    a(f"s_cbranch_execz {L}_x")
    a(f"global_store_dword v14, v15, s[{sDBG}:{sDBG+1}] sc1")
    a(f"{L}_x:")
    a("s_mov_b64 exec, s[30:31]")
    a(f"{L}:")

def colsum_loads(a):
    g = G; b = sIDX
    a(f"s_cmp_lt_u32 s{b}, 30")
    a(f"s_cselect_b32 s32, s{sWQKV}, s{sWG}")
    a(f"s_cselect_b32 s33, s{sWQKV+1}, s{sWG+1}")
    a("s_mov_b32 s34, 3456")
    a("s_cselect_b32 s34, 3840, s34")
    a("s_mov_b32 s35, 30")
    a("s_cselect_b32 s35, 0, s35")
    a(f"s_mov_b32 s36, {D*F*2}")
    a(f"s_cselect_b32 s36, {D*3*D*2}, s36")
    a(f"s_cmp_ge_u32 s{b}, 57")
    a(f"s_cselect_b32 s32, s{sWU}, s32")
    a(f"s_cselect_b32 s33, s{sWU+1}, s33")
    a("s_cselect_b32 s35, 57, s35")
    a("s_mov_b32 s8, s32")
    a("s_and_b32 s9, s33, 0xffff")
    a("s_mov_b32 s10, s36")
    a("s_mov_b32 s11, 0x00020000")
    a(f"s_sub_u32 s35, s{b}, s35")
    a("s_lshl_b32 s35, s35, 7")
    a("v_lshrrev_b32 v17, 3, v0")
    a("v_mul_lo_u32 v17, v17, s34")
    a("v_and_b32 v18, 7, v0")
    a("v_lshl_add_u32 v17, v18, 4, v17")
    a("s_lshl_b32 s37, s34, 5")
    for i in range(20):
        a(f"buffer_load_dwordx4 v[{128+4*i}:{131+4*i}], v17, s[8:11], s35 offen")
        a("s_add_u32 s35, s35, s37")

def colsum_compute(a, tag):
    g = G; b = sIDX
    a("s_waitcnt vmcnt(0)")
    for j in range(8):
        a(f"v_mov_b32 v{24+j}, 0")
    for i in range(20):
        for r in range(4):
            src = 128 + 4*i + r
            a(f"v_lshlrev_b32 v32, 16, v{src}")
            a(f"v_and_b32 v33, 0xffff0000, v{src}")
            a(f"v_add_f32 v{24+2*r}, v{24+2*r}, v32")
            a(f"v_add_f32 v{25+2*r}, v{25+2*r}, v33")
    a("s_nop 1")
    for j in range(8):
        a(f"v_add_f32_dpp v{24+j}, v{24+j}, v{24+j} row_ror:8 row_mask:0xf bank_mask:0xf")
    a("v_lshrrev_b32 v34, 4, v1")
    a(f"s_lshl_b32 s30, s{g.sW}, 2")
    a("v_add_u32 v34, s30, v34")
    a("v_lshlrev_b32 v34, 8, v34")
    a("v_and_b32 v35, 7, v1")
    a("v_lshl_add_u32 v34, v35, 5, v34")
    a("ds_write_b128 v34, v[24:27]")
    a("ds_write_b128 v34, v[28:31] offset:16")
    a("s_waitcnt lgkmcnt(0)")
    a("s_barrier")
    a(f"s_cmp_lg_u32 s{g.sW}, 0")
    a(f"s_cbranch_scc1 {tag}_b")
    a("v_lshlrev_b32 v34, 2, v1")
    for i in range(16):
        a(f"ds_read_b32 v{36+i}, v34 offset:{256*i}")
    a("s_waitcnt lgkmcnt(0)")
    for i in range(1, 16):
        a(f"v_add_f32 v36, v36, v{36+i}")
    a(f"s_lshl_b32 s30, s{b}, 8")
    a(f"s_add_u32 s30, s30, {CS_OFF}")
    a(f"buffer_store_dword v36, v34, s[16:19], s30 offen{SC}")
    a(f"{tag}_b:")

def phase_B0(a):
    g = G
    b = sIDX
    L = a.label("b0")
    srd(a, 4, sX, S*D*2)
    srd(a, 16, sWS, 0x10000)
    a(f"s_cmp_ge_u32 s{g.sW}, 2")
    a(f"s_cbranch_scc1 {L}_a")
    a("v_lshrrev_b32 v14, 4, v1")
    a(f"s_lshl_b32 s30, s{b}, 3")
    a(f"s_lshl_b32 s31, s{g.sW}, 2")
    a("s_add_u32 s30, s30, s31")
    a("v_add_u32 v14, s30, v14")
    a("v_mul_u32_u24 v15, 1280, v14")
    a("v_and_b32 v16, 15, v1")
    a("v_lshl_add_u32 v15, v16, 4, v15")
    for t in range(5):
        a(f"buffer_load_dwordx4 v[{100+4*t}:{103+4*t}], v15, s[4:7], 0 offen offset:{256*t}")
    a(f"{L}_a:")
    a(f"s_cmp_ge_u32 s{b}, 30")
    a(f"s_cbranch_scc1 {L}_c")
    colsum_loads(a)
    a(f"{L}_c:")
    a(f"s_cmp_ge_u32 s{g.sW}, 2")
    a(f"s_cbranch_scc1 {L}_s")
    a(f"s_cmp_ge_u32 s{b}, 30")
    a(f"s_cbranch_scc1 {L}_w0")
    a("s_waitcnt vmcnt(20)")
    a(f"s_branch {L}_w1")
    a(f"{L}_w0:")
    a("s_waitcnt vmcnt(0)")
    a(f"{L}_w1:")
    for i in range(20):
        a(f"v_lshlrev_b32 v{24+2*i}, 16, v{100+i}")
        a(f"v_and_b32 v{25+2*i}, 0xffff0000, v{100+i}")
    a("v_add_f32 v64, v24, v25")
    for i in range(2, 40):
        a(f"v_add_f32 v64, v64, v{24+i}")
    def red(r):
        for sh in (8, 4, 2, 1):
            a("s_nop 1")
            a(f"v_add_f32_dpp v{r}, v{r}, v{r} row_ror:{sh} row_mask:0xf bank_mask:0xf")
    red(64)
    a(f"v_mul_f32 v64, {f32(1.0/640)}, v64")
    for i in range(40):
        a(f"v_sub_f32 v{24+i}, v{24+i}, v64")
    a("v_mul_f32 v65, v24, v24")
    for i in range(1, 40):
        a(f"v_fmac_f32 v65, v{24+i}, v{24+i}")
    red(65)
    a(f"v_mov_b32 v67, {f32(1e-5)}")
    a(f"v_fmac_f32 v67, {f32(1.0/640)}, v65")
    a("v_rsq_f32 v67, v67")
    a("s_nop 0")
    a("v_mul_f32 v66, v64, v67")
    a("v_lshlrev_b32 v14, 3, v14")
    a("v_cmp_eq_u32 vcc, 0, v16")
    a("v_mov_b32 v15, 0x7ffffff0")
    a("s_nop 0")
    a("v_cndmask_b32 v14, v15, v14, vcc")
    a(f"buffer_store_dwordx2 v[66:67], v14, s[16:19], 0 offen{SC}")
    a(f"{L}_s:")
    a(f"s_cmp_ge_u32 s{b}, 30")
    a(f"s_cbranch_scc1 {L}_d")
    colsum_compute(a, L + "_u")
    a(f"{L}_d:")
    if not MULTI:
        wait_ready(a, 14, 30)
        a(f"s_lshr_b32 s30, s{b}, 4")
        a("s_lshl_b32 s30, s30, 3")
        a(f"s_add_u32 s30, s30, {C_ST}")
        a("v_add_u32 v14, s30, v1")
        a(f"s_add_u32 s31, s{b}, {C_CS}")
        a(f"s_cmp_ge_u32 s{b}, 30")
        a("s_cselect_b32 s31, 0x100000, s31")
        a("v_mov_b32 v15, s31")
        a("v_cmp_eq_u32 vcc, 8, v1")
        a("s_nop 1")
        a("v_cndmask_b32 v14, v14, v15, vcc")
        a("v_lshlrev_b32 v14, 7, v14")
        signal(a, g.sW, 14, 15, 30, 9)
    else:
        a("s_waitcnt vmcnt(0)")
    a("s_barrier")
    a(f"s_cmp_lt_u32 s{b}, 30")
    a(f"s_cbranch_scc1 {L}_e")
    a(f"s_cmp_ge_u32 s{b}, 84")
    a(f"s_cbranch_scc1 {L}_e")
    colsum_loads(a)
    colsum_compute(a, L + "_n")
    if not MULTI:
        a(f"s_add_u32 s30, s{b}, {C_CS}")
        a("s_lshl_b32 s30, s30, 7")
        a("v_mov_b32 v14, s30")
        signal(a, g.sW, 14, 15, 30, 1)
    else:
        a("s_waitcnt vmcnt(0)")
    a("s_barrier")
    a(f"{L}_e:")

def ln_wait(a, rb_s, p0_s, p1_s):
    if MULTI: return
    wait_ready(a, 14, 30)
    a("s_and_b32 s30, s2, 7")
    a(f"s_lshl_b32 s31, s{rb_s}, 3")
    a("s_add_u32 s30, s30, s31")
    a(f"s_add_u32 s30, s30, {C_ST}")
    a("v_mov_b32 v14, s30")
    a("v_mov_b32 v15, 16")
    a(f"s_add_u32 s30, s{p0_s}, {C_CS}")
    a(f"s_add_u32 s31, s{p1_s}, {C_CS}")
    a("v_writelane_b32 v14, s30, 1")
    a("v_writelane_b32 v14, s31, 2")
    a("v_writelane_b32 v15, 1, 1")
    a("v_writelane_b32 v15, 1, 2")
    a("v_lshlrev_b32 v14, 7, v14")
    wait_counters(a, 14, 15, 16, 30, 3)

def ln_load_T(a, rowbase_s, cs0_s, cs1_s, R):
    g = G
    a("v_and_b32 v14, 31, v1")
    a(f"s_lshl_b32 s30, s{g.sWm}, 6")
    a(f"s_add_u32 s30, s30, s{rowbase_s}")
    a("v_add_u32 v14, s30, v14")
    a("v_lshlrev_b32 v14, 3, v14")
    a(f"buffer_load_dwordx2 v[{R}:{R+1}], v14, s[16:19], 0 offen{SC}")
    a(f"buffer_load_dwordx2 v[{R+2}:{R+3}], v14, s[16:19], 0 offen offset:256{SC}")
    a("v_lshrrev_b32 v15, 5, v1")
    a("v_lshlrev_b32 v15, 4, v15")
    a(f"s_lshl_b32 s30, s{g.sWn}, 7")
    a("v_add_u32 v15, s30, v15")
    for v, cs in enumerate((cs0_s, cs1_s)):
        a(f"s_lshl_b32 s30, s{cs}, 2")
        a(f"s_add_u32 s30, s30, {CS_OFF}")
        for aa in range(4):
            r = R + 4 + 16*v + 4*aa
            a(f"buffer_load_dwordx4 v[{r}:{r+3}], v15, s[16:19], s30 offen offset:{32*aa}{SC}")

def phase_A1(a):
    g = G
    Lend = a.label("a1_end"); Lv = a.label("a1_v")
    a(f"s_and_b32 s40, s{sIDX}, 7")
    a(f"s_lshr_b32 s41, s{sIDX}, 3")
    a("s_lshr_b32 s42, s40, 1")
    a("s_and_b32 s43, s40, 1")
    a("s_lshl_b32 s44, s42, 2")
    a("s_and_b32 s45, s41, 3")
    a("s_add_u32 s44, s44, s45")
    a("s_lshl_b32 s45, s43, 3")
    a("s_lshr_b32 s46, s41, 2")
    a("s_add_u32 s45, s45, s46")
    srd(a, g.sA_srd, sX, S*D*2)
    srd(a, g.sB0_srd, sWQKV, D*3*D*2)
    srd(a, g.sB1_srd, sWQKV, D*3*D*2)
    a("s_cmp_ge_u32 s45, 15")
    a(f"s_cbranch_scc1 {Lend}")
    a(f"s_mul_i32 s{g.sA}, s44, {128*1280}")
    a(f"s_lshl_b32 s{g.sB0}, s45, 8")
    rot_value(a, 46, 41, 1, 3, 10)
    rot_setup(a, 10, 128, 3840, 46)
    gemm_setup_dma(a, 1280, 3840)
    ring = Ring(2, 10)
    gemm_prologue_dma(a, ring, 1280, 3840)
    gemm_setup_reads(a, 2)
    srd(a, 16, sWS, 0x10000)
    a("s_lshl_b32 s46, s44, 7")
    a("s_lshl_b32 s47, s45, 1")
    a("s_add_u32 s48, s47, 1")
    a("s_lshl_b32 s49, s45, 7")
    a("s_add_u32 s50, s49, 64")
    R = 132
    a("s_cmp_ge_u32 s45, 10")
    a(f"s_cbranch_scc1 {Lv}")
    gemm_main(a, 2, 10, True, 1280, 3840, prologue_done=True, stampbase=1)
    stamp(a, 2)
    ln_wait(a, 44, 47, 48)
    ln_load_T(a, 46, 49, 50, R)
    a("s_cmp_ge_u32 s45, 5")
    a("s_cselect_b32 s42, 1, 0")
    a("s_mul_i32 s43, s42, 5")
    a("s_sub_u32 s43, s45, s43")
    a(f"s_mov_b32 s30, {Q4_OFF}")
    a(f"s_mov_b32 s31, {K4_OFF}")
    a("s_cmp_eq_u32 s42, 1")
    a("s_cselect_b32 s30, s31, s30")
    a(f"s_add_u32 s8, s{sWS}, s30")
    a(f"s_addc_u32 s9, s{sWS+1}, 0")
    a("s_and_b32 s9, s9, 0xffff")
    a(f"s_mov_b32 s10, {160*GS}")
    a("s_mov_b32 s11, 0x00020000")
    a("s_cmp_eq_u32 s42, 1")
    a(f"s_mov_b32 s53, {f32(QSCALE)}")
    a("s_cselect_b32 s53, 1.0, s53")
    a("s_lshl_b32 s30, s43, 5")
    a(f"s_lshl_b32 s31, s{g.sWn}, 3")
    a("s_add_u32 s30, s30, s31")
    a("s_lshl_b32 s30, s30, 14")
    a(f"s_lshl_b32 s31, s{g.sWm}, 6")
    a("s_add_u32 s31, s31, s46")
    a("s_lshl_b32 s31, s31, 3")
    a("s_add_u32 s51, s30, s31")
    a("v_lshrrev_b32 v14, 5, v1")
    a("v_lshlrev_b32 v14, 14, v14")
    a("v_and_b32 v15, 31, v1")
    a("v_lshl_add_u32 v14, v15, 3, v14")
    a("s_waitcnt vmcnt(0)")
    for u in range(2):
        a(f"v_mul_f32 v{R+2*u}, s53, v{R+2*u}")
        a(f"v_mul_f32 v{R+2*u+1}, s53, v{R+2*u+1}")
    k = 0
    for v in range(2):
        for aa in range(4):
            for u in range(2):
                acc = g.ACC + 16*(2*u + v) + 4*aa
                cs = R + 4 + 16*v + 4*aa
                t0 = 16 + 6*(k & 1); k += 1
                for b in range(4):
                    a(f"v_mul_f32 v{t0+b}, v{R+2*u}, v{cs+b}")
                for b in range(4):
                    a(f"v_fma_f32 v{t0+b}, v{acc+b}, v{R+2*u+1}, -v{t0+b}")
                a(f"v_cvt_pk_bf16_f32 v{t0+4}, v{t0}, v{t0+1}")
                a(f"v_cvt_pk_bf16_f32 v{t0+5}, v{t0+2}, v{t0+3}")
                a(f"s_add_u32 s30, s51, {(16*v + 2*aa)*GS + 256*u}")
                a(f"buffer_store_dwordx2 v[{t0+4}:{t0+5}], v14, s[8:11], s30 offen{SC}")
    a(f"s_branch {Lend}_s")
    a(f"{Lv}:")
    gemm_main(a, 2, 10, False, 1280, 3840, prologue_done=True, stampbase=1)
    stamp(a, 2)
    ln_wait(a, 44, 47, 48)
    a("v_and_b32 v14, 31, v1")
    a(f"s_lshl_b32 s30, s{g.sWn}, 5")
    a("s_add_u32 s30, s30, s49")
    a("v_add_u32 v14, s30, v14")
    a("v_lshlrev_b32 v14, 2, v14")
    a(f"s_mov_b32 s30, {CS_OFF}")
    a(f"buffer_load_dword v{R}, v14, s[16:19], s30 offen{SC}")
    a(f"buffer_load_dword v{R+1}, v14, s[16:19], s30 offen offset:256{SC}")
    a("v_lshrrev_b32 v15, 5, v1")
    a("v_lshlrev_b32 v15, 5, v15")
    a(f"s_lshl_b32 s30, s{g.sWm}, 6")
    a("s_add_u32 s30, s30, s46")
    a("s_lshl_b32 s30, s30, 3")
    for u in range(2):
        for aa in range(4):
            r = R + 4 + 32*u + 8*aa
            a(f"buffer_load_dwordx4 v[{r}:{r+3}], v15, s[16:19], s30 offen offset:{256*u + 64*aa}{SC}")
            a(f"buffer_load_dwordx4 v[{r+4}:{r+7}], v15, s[16:19], s30 offen offset:{256*u + 64*aa + 16}{SC}")
    a("s_sub_u32 s43, s45, 10")
    srd(a, 8, sWS, VHS*32, V_OFF)
    a("s_lshl_b32 s30, s44, 2")
    a(f"s_lshl_b32 s31, s{g.sWm}, 1")
    a("s_add_u32 s30, s30, s31")
    a("s_mul_i32 s52, s30, 1280")
    a("s_lshl_b32 s31, s43, 7")
    a(f"s_lshl_b32 s32, s{g.sWn}, 5")
    a("s_add_u32 s31, s31, s32")
    a("v_and_b32 v14, 31, v1")
    a("v_add_u32 v14, s31, v14")
    a("v_lshrrev_b32 v15, 5, v1")
    a("v_mul_u32_u24 v15, 320, v15")
    a(f"s_mov_b32 s51, {VHS}")
    a("s_waitcnt vmcnt(0)")
    k = 0
    for v in range(2):
        a(f"v_add_u32 v16, {64*v}, v14")
        a("v_mul_u32_u24 v17, 3277, v16")
        a("v_lshrrev_b32 v17, 16, v17")
        a("v_mul_u32_u24 v18, 20, v17")
        a("v_sub_u32 v18, v16, v18")
        a("v_mul_lo_u32 v19, v17, s51")
        a("v_add_u32 v19, v19, v15")
        a("v_lshl_add_u32 v19, v18, 4, v19")
        for u in range(2):
            acc = g.ACC + 16*(2*u + v)
            for half in range(2):
                t0 = 200 + 12*(k & 1); k += 1
                for j8 in range(8):
                    rI = 8*half + j8
                    st = R + 4 + 32*u + 8*(rI >> 2) + 2*(rI & 3)
                    a(f"v_mul_f32 v{t0+j8}, v{st}, v{R+v}")
                    a(f"v_fma_f32 v{t0+j8}, v{acc+rI}, v{st+1}, -v{t0+j8}")
                for j in range(4):
                    a(f"v_cvt_pk_bf16_f32 v{t0+8+j}, v{t0+2*j}, v{t0+1+2*j}")
                a(f"s_add_u32 s30, s52, {1280*u + 640*half}")
                a(f"buffer_store_dwordx4 v[{t0+8}:{t0+11}], v19, s[8:11], s30 offen{SC}")
    a(f"{Lend}_s:")
    stamp(a, 3)
    if not MULTI:
        a("s_lshl_b32 s30, s43, 3")
        a(f"s_add_u32 s30, s30, {C_KV}")
        a("v_add_u32 v14, s30, v1")
        a("v_lshlrev_b32 v14, 7, v14")
        signal(a, g.sW, 14, 15, 30, 8)
    else:
        a("s_waitcnt vmcnt(0)")
    a(f"{Lend}:")

def phase_A2(a):
    g = G
    sWv = g.sW
    a(f"s_and_b32 s27, s{sWv}, 1")
    a(f"s_lshr_b32 s28, s{sWv}, 1")
    a(f"s_and_b32 s40, s{sIDX}, 7")
    a(f"s_lshr_b32 s41, s{sIDX}, 3")
    a("s_and_b32 s42, s41, 3")
    a("s_lshl_b32 s40, s40, 2")
    a("s_add_u32 s40, s40, s42")
    a("s_lshr_b32 s41, s41, 2")
    srd(a, 4, sWS, 160*GS, Q4_OFF)
    srd(a, 8, sWS, 160*GS, K4_OFF)
    srd(a, 12, sWS, 160*GS, O4_OFF)
    srd(a, 16, sWS, WS_USED)
    Q1, Q2 = 2, 18
    O = 34
    S0, S1 = 98, 114
    P = 130
    KA = [138, 146]
    VA = [154, 162]
    vKa, vKb, vKc, vV, vVi = 170, 171, 172, 173, 174
    T = 176
    a(f"v_cmp_eq_u32 vcc, 0, v1")
    a(f"v_cmp_eq_u32 s[30:31], 40, v1")
    a("s_or_b64 vcc, vcc, s[30:31]")
    a(f"v_mov_b32 v{T+4}, 0x3f803f80")
    a("s_nop 0")
    a(f"v_cndmask_b32 v{T}, 0, v{T+4}, vcc")
    for r in range(1, 4):
        a(f"v_mov_b32 v{T+r}, v{T}")
    a(f"v_lshlrev_b32 v{T+4}, 4, v1")
    a("s_lshl_b32 s30, s2, 10")
    a(f"s_add_u32 s53, s30, {ONES_OFF}")
    a(f"buffer_store_dwordx4 v[{T}:{T+3}], v{T+4}, s[16:19], s53 offen{SC}")
    a(f"v_and_b32 v{T+5}, 31, v1")
    a(f"v_lshrrev_b32 v{T+6}, 5, v1")
    a(f"v_lshlrev_b32 v{T+7}, 15, v{T+6}")
    a(f"v_lshl_add_u32 v{vKa}, v{T+5}, 3, v{T+7}")
    a(f"v_add_u32 v{vKb}, {GS}, v{vKa}")
    a(f"v_lshlrev_b32 v{vKc}, 3, v{T+5}")
    a(f"v_add_u32 v{vKc}, {4*GS}, v{vKc}")
    a(f"s_mul_i32 s30, s40, {VHS}")
    a(f"s_mul_i32 s31, s28, {32*1280}")
    a("s_add_u32 s30, s30, s31")
    a(f"s_add_u32 s54, s30, {V_OFF}")
    a(f"v_mul_u32_u24 v{T+7}, 320, v{T+6}")
    a(f"v_lshl_add_u32 v{T+7}, v{T+5}, 4, v{T+7}")
    a(f"v_add_u32 v{T+7}, s54, v{T+7}")
    a(f"v_cmp_lt_u32 vcc, 20, v{T+5}")
    a(f"v_mov_b32 v{T+8}, s53")
    a(f"v_add_u32 v{T+9}, 16, v{T+8}")
    a(f"v_cndmask_b32 v{T+8}, v{T+8}, v{T+9}, vcc")
    a(f"v_cmp_gt_u32 vcc, 20, v{T+5}")
    a(f"v_mov_b32 v{T+9}, 1280")
    a(f"v_mov_b32 v{T+10}, 0")
    a(f"v_cndmask_b32 v{T+11}, v{T+8}, v{T+7}, vcc")
    a(f"v_cndmask_b32 v{vVi}, v{T+10}, v{T+9}, vcc")
    for st in range(2):
        a(f"v_mov_b32 v{KA[st]+6}, 0x3f803f80")
        a(f"v_mov_b32 v{KA[st]+7}, 0x00003f80")
    for j in range(4):
        for r in range(4):
            a(f"v_mov_b32 v{Q2+4*j+r}, 0")
    if not MULTI:
        wait_ready(a, T, 30)
        a("s_mul_i32 s30, s40, 20")
        a("s_add_u32 s31, s30, 19")
        a("s_lshr_b32 s30, s30, 7")
        a("s_lshr_b32 s31, s31, 7")
        a("s_and_b32 s32, s2, 7")
        a("s_lshl_b32 s30, s30, 3")
        a("s_lshl_b32 s31, s31, 3")
        a("s_add_u32 s30, s30, s32")
        a("s_add_u32 s31, s31, s32")
        a(f"v_mov_b32 v{T}, s30")
        a(f"v_writelane_b32 v{T}, s31, 1")
        a(f"v_lshlrev_b32 v{T}, 7, v{T}")
        a(f"v_mov_b32 v{T+1}, 48")
        wait_counters(a, T, T+1, T+2, 30, 2)
    else:
        a("s_waitcnt vmcnt(0)")
    stamp(a, 4)
    a("s_lshl_b32 s43, s41, 3")
    a("s_lshl_b32 s44, s27, 2")
    a("s_add_u32 s43, s43, s44")
    a(f"s_mul_i32 s45, s40, {5*GS}")
    a("s_lshl_b32 s44, s43, 8")
    a("s_add_u32 s44, s44, s45")
    for j in range(4):
        a(f"s_add_u32 s30, s44, {256*j}")
        a(f"buffer_load_dwordx2 v[{Q1+4*j}:{Q1+4*j+1}], v{vKa}, s[4:7], s30 offen{SC}")
        a(f"buffer_load_dwordx2 v[{Q1+4*j+2}:{Q1+4*j+3}], v{vKb}, s[4:7], s30 offen{SC}")
    a("s_mov_b64 s[46:47], exec")
    a("s_mov_b32 exec_hi, 0")
    for j in range(4):
        a(f"s_add_u32 s30, s44, {256*j}")
        a(f"buffer_load_dwordx2 v[{Q2+4*j}:{Q2+4*j+1}], v{vKc}, s[4:7], s30 offen{SC}")
    a("s_mov_b64 exec, s[46:47]")
    a("s_lshl_b32 s54, s28, 13")
    a("s_add_u32 s54, s54, s45")
    a("s_mov_b32 s55, 0")
    def ldK(st):
        a(f"buffer_load_dwordx2 v[{KA[st]}:{KA[st]+1}], v{vKa}, s[8:11], s48 offen{SC}")
        a(f"buffer_load_dwordx2 v[{KA[st]+2}:{KA[st]+3}], v{vKb}, s[8:11], s48 offen{SC}")
        a(f"buffer_load_dwordx2 v[{KA[st]+4}:{KA[st]+5}], v{vKc}, s[8:11], s48 offen{SC}")
        a("s_add_u32 s48, s48, 256")
    def ldV(st):
        a(f"buffer_load_dwordx4 v[{VA[st]}:{VA[st]+3}], v{vV}, s[16:19], 0 offen{SC}")
        a(f"buffer_load_dwordx4 v[{VA[st]+4}:{VA[st]+7}], v{vV}, s[16:19], 0 offen offset:640{SC}")
        a(f"v_add_u32 v{vV}, v{vV}, v{vVi}")
    SB = [S0, S1]
    def mf(d, x, y, c):
        a(f"v_mfma_f32_32x32x16_bf16 v[{d}:{d+15}], v[{x}:{x+3}], v[{y}:{y+3}], {c}")
    def qk1(Sn, kst, j): mf(Sn, KA[kst], Q1+4*j, "0")
    def qk2(Sn, kst, j): mf(Sn, KA[kst]+4, Q2+4*j, f"v[{Sn}:{Sn+15}]")
    PB = [P, 188]
    def pv(j, vst, half, Pr): mf(O+16*j, VA[vst]+4*half, Pr+4*half, f"v[{O+16*j}:{O+16*j+15}]")
    a("L_att_pass:")
    a("s_mov_b32 s48, s54")
    a(f"v_mov_b32 v{vV}, v{T+11}")
    ldK(0); ldV(0); ldK(1)
    for r in range(64):
        a(f"v_mov_b32 v{O+r}, 0")
    for r in range(8):
        a(f"v_mov_b32 v{PB[1]+r}, 0")
    for r in range(8):
        a(f"v_mov_b32 v{VA[1]+r}, 0")
    a("s_waitcnt vmcnt(5)")
    qk1(S0, 0, 0); qk2(S0, 0, 0)
    a("s_nop 15")
    stamp(a, 5)
    def step(kst, j):
        Sc = SB[j & 1]; Sn = SB[(j + 1) & 1]
        Pc = PB[j & 1]; Pp = PB[(j + 1) & 1]
        e = lambda i: a(f"v_exp_f32 v{Sc+i}, v{Sc+i}")
        c = lambda i: a(f"v_cvt_pk_bf16_f32 v{Pc+i}, v{Sc+2*i}, v{Sc+2*i+1}")
        pj = (j - 1) & 3
        pvst = kst if j > 0 else kst ^ 1
        nk = kst if j < 3 else kst ^ 1
        nj = (j + 1) & 3
        if j == 3:
            a("s_waitcnt vmcnt(2)")
        qk1(Sn, nk, nj)
        e(0); e(1); e(2)
        qk2(Sn, nk, nj)
        if j == 3:
            ldK(kst)
        e(3); e(4); e(5)
        if j == 1:
            a("s_waitcnt vmcnt(5)")
        pv(pj, pvst, 0, Pp)
        e(6); e(7); c(0); c(1)
        pv(pj, pvst, 1, Pp)
        if j == 0:
            ldV(kst ^ 1)
        e(8); e(9); c(2); c(3)
        e(10); e(11); e(12); e(13); c(4); c(5)
        e(14); e(15); c(6); c(7)
    a("s_mov_b32 s50, 16")
    a(".p2align 6")
    a("L_at_loop:")
    for kst in range(2):
        for j in range(4):
            step(kst, j)
    a("s_sub_u32 s50, s50, 1")
    a("s_cmp_lg_u32 s50, 0")
    a("s_cbranch_scc1 L_at_loop")
    a("s_nop 1")
    pv(3, 1, 0, PB[1])
    pv(3, 1, 1, PB[1])
    stamp(a, 6)
    a(f"v_lshlrev_b32 v{T}, 2, v1")
    a(f"s_mul_i32 s51, s{sWv}, 6144")
    a(f"v_add_u32 v{T+1}, s51, v{T}")
    a(f"s_xor_b32 s52, s{sWv}, 2")
    a("s_mul_i32 s52, s52, 6144")
    a(f"v_add_u32 v{T+2}, s52, v{T}")
    a("s_nop 10")
    a("s_cmp_eq_u32 s28, 0")
    a("s_cbranch_scc0 L_at_kh1")
    for t2 in range(2):
        for r in range(12):
            a(f"ds_write_b32 v{T+1}, v{O+16*(2+t2)+r} offset:{(t2*12+r)*256}")
    a("s_waitcnt lgkmcnt(0)")
    a("s_barrier")
    for t2 in range(2):
        for r in range(12):
            a(f"ds_read_b32 v{S0+t2*12+r}, v{T+2} offset:{(t2*12+r)*256}")
    a("s_waitcnt lgkmcnt(0)")
    for t2 in range(2):
        for r in range(12):
            a(f"v_add_f32 v{O+16*t2+r}, v{O+16*t2+r}, v{S0+t2*12+r}")
    a("s_branch L_at_fin")
    a("L_at_kh1:")
    for t2 in range(2):
        for r in range(12):
            a(f"ds_write_b32 v{T+1}, v{O+16*t2+r} offset:{(t2*12+r)*256}")
    a("s_waitcnt lgkmcnt(0)")
    a("s_barrier")
    for t2 in range(2):
        for r in range(12):
            a(f"ds_read_b32 v{S0+t2*12+r}, v{T+2} offset:{(t2*12+r)*256}")
    a("s_waitcnt lgkmcnt(0)")
    for t2 in range(2):
        for r in range(12):
            a(f"v_add_f32 v{O+16*t2+r}, v{O+16*(2+t2)+r}, v{S0+t2*12+r}")
    a("L_at_fin:")
    for t2 in range(2):
        o = O + 16*t2
        a(f"v_mov_b32 v{T+4+2*t2}, v{o+8}")
        a(f"v_mov_b32 v{T+5+2*t2}, v{o+8}")
    a("s_nop 1")
    for t2 in range(2):
        a(f"v_permlane32_swap_b32 v{T+4+2*t2}, v{T+5+2*t2}")
    a("s_nop 1")
    a("s_cmp_lg_u32 s55, 0")
    a("s_cbranch_scc1 L_at_store")
    a("s_mov_b64 s[44:45], 0")
    a("s_mov_b32 s46, 0x207")
    for t2 in range(2):
        o = O + 16*t2
        for r in range(12):
            a(f"v_cmp_class_f32 vcc, v{o+r}, s46")
            if r >= 8:
                a("s_mov_b32 vcc_hi, 0")
            a("s_or_b64 s[44:45], s[44:45], vcc")
        a(f"v_cmp_nle_f32 vcc, {f32(2.0**-40)}, v{T+5+2*t2}")
        a("s_or_b64 s[44:45], s[44:45], vcc")
        a(f"v_cmp_nge_f32 vcc, {f32(2.0**60)}, v{T+5+2*t2}")
        a("s_or_b64 s[44:45], s[44:45], vcc")
    a("s_cmp_lg_u64 s[44:45], 0")
    a("s_cselect_b32 s44, 1, 0")
    a(f"v_mov_b32 v{T+8}, s44")
    a(f"s_lshl_b32 s45, s{sWv}, 2")
    a(f"s_add_u32 s45, s45, 24576")
    a(f"v_mov_b32 v{T+9}, s45")
    a(f"ds_write_b32 v{T+9}, v{T+8}")
    a("s_waitcnt lgkmcnt(0)")
    a("s_barrier")
    a(f"v_mov_b32 v{T+9}, 24576")
    a(f"ds_read_b128 v[{T+12}:{T+15}], v{T+9}")
    a("s_waitcnt lgkmcnt(0)")
    a(f"v_or_b32 v{T+12}, v{T+12}, v{T+13}")
    a(f"v_or_b32 v{T+14}, v{T+14}, v{T+15}")
    a(f"v_or_b32 v{T+12}, v{T+12}, v{T+14}")
    a("s_nop 0")
    a(f"v_readfirstlane_b32 s44, v{T+12}")
    a("s_cmp_eq_u32 s44, 0")
    a("s_cbranch_scc1 L_at_store")
    M = O
    a("s_waitcnt vmcnt(0)")
    for j in range(4):
        a(f"v_mov_b32 v{M+j}, 0xff800000")
    a("s_mov_b32 s48, s54")
    a("s_mov_b32 s50, 32")
    a("L_at_maxloop:")
    ldK(0)
    a("s_waitcnt vmcnt(0)")
    for j in range(4):
        qk1(S0, 0, j); qk2(S0, 0, j)
        a("s_nop 15")
        a("s_nop 3")
        for r in range(16):
            a(f"v_max_f32 v{M+j}, v{M+j}, v{S0+r}")
        a("s_nop 3")
    a("s_sub_u32 s50, s50, 1")
    a("s_cmp_lg_u32 s50, 0")
    a("s_cbranch_scc1 L_at_maxloop")
    for j in range(4):
        a(f"v_mov_b32 v{T+4}, v{M+j}")
        a(f"v_mov_b32 v{T+5}, v{M+j}")
        a("s_nop 1")
        a(f"v_permlane32_swap_b32 v{T+4}, v{T+5}")
        a("s_nop 1")
        a(f"v_max_f32 v{M+j}, v{T+4}, v{T+5}")
    a("s_barrier")
    for j in range(4):
        a(f"ds_write_b32 v{T+1}, v{M+j} offset:{j*256}")
    a("s_waitcnt lgkmcnt(0)")
    a("s_barrier")
    for j in range(4):
        a(f"ds_read_b32 v{S1+j}, v{T+2} offset:{j*256}")
    a("s_waitcnt lgkmcnt(0)")
    for j in range(4):
        a(f"v_max_f32 v{M+j}, v{M+j}, v{S1+j}")
        a(f"v_sub_f32 v{T+4}, 0, v{M+j}")
        a(f"v_cvt_pk_bf16_f32 v{T+5}, v{T+4}, v{T+4}")
        a(f"v_lshlrev_b32 v{T+6}, 16, v{T+5}")
        a(f"v_sub_f32 v{T+4}, v{T+4}, v{T+6}")
        a(f"v_cvt_pk_bf16_f32 v{T+7}, v{T+4}, v{T+4}")
        a(f"v_lshlrev_b32 v{T+8}, 16, v{T+7}")
        a(f"v_sub_f32 v{T+4}, v{T+4}, v{T+8}")
        a(f"v_cvt_pk_bf16_f32 v{T+9}, v{T+4}, v{T+4}")
        a(f"v_and_b32 v{T+5}, 0xffff, v{T+5}")
        a(f"v_or_b32 v{T+5}, v{T+5}, v{T+8}")
        a(f"v_and_b32 v{T+9}, 0xffff, v{T+9}")
        a("s_mov_b32 exec_hi, 0")
        a(f"v_mov_b32 v{Q2+4*j+2}, v{T+5}")
        a(f"v_mov_b32 v{Q2+4*j+3}, v{T+9}")
        a("s_mov_b32 exec_hi, -1")
    a("s_barrier")
    a("s_mov_b32 s55, 1")
    a("s_branch L_att_pass")
    a("L_at_store:")
    a("s_lshl_b32 s51, s28, 1")
    a("s_add_u32 s51, s51, s43")
    a("s_lshl_b32 s51, s51, 8")
    a("s_add_u32 s51, s51, s45") if False else None
    a(f"s_mul_i32 s52, s40, {5*GS}")
    a("s_add_u32 s51, s51, s52")
    a(f"v_and_b32 v{T}, 31, v1")
    a(f"v_lshrrev_b32 v{T+1}, 5, v1")
    a(f"v_lshlrev_b32 v{T+2}, 14, v{T+1}")
    a(f"v_lshl_add_u32 v{T}, v{T}, 3, v{T+2}")
    a(f"v_cmp_eq_u32 vcc, 0, v{T+1}")
    a(f"v_mov_b32 v{T+8}, 0x7ffffff0")
    a("s_nop 0")
    a(f"v_cndmask_b32 v{T+3}, v{T+8}, v{T}, vcc")
    for t2 in range(2):
        o = O + 16*t2
        a(f"v_rcp_f32 v{T+9}, v{T+5+2*t2}")
        a("s_nop 0")
        for r in range(12):
            a(f"v_mul_f32 v{o+r}, v{o+r}, v{T+9}")
        pk = S1 + 6*t2
        for gI in range(3):
            a(f"v_cvt_pk_bf16_f32 v{pk+2*gI}, v{o+4*gI}, v{o+4*gI+1}")
            a(f"v_cvt_pk_bf16_f32 v{pk+2*gI+1}, v{o+4*gI+2}, v{o+4*gI+3}")
        for gI in range(3):
            a(f"s_add_u32 s30, s51, {2*gI*GS + 256*t2}")
            va = T if gI < 2 else T+3
            a(f"buffer_store_dwordx2 v[{pk+2*gI}:{pk+2*gI+1}], v{va}, s[12:15], s30 offen{SC}")
    if not MULTI:
        a(f"s_add_u32 s30, s41, {C_O}")
        a("s_lshl_b32 s30, s30, 7")
        a(f"v_mov_b32 v{T}, s30")
        signal(a, sWv, T, T+1, 30, 1)
    a("s_waitcnt vmcnt(0)")
    stamp(a, 7)

def gu_touches(a):
    g = G; b = sIDX
    L = a.label("gut")
    a(f"s_and_b32 s40, s{b}, 7")
    a(f"s_lshr_b32 s41, s{b}, 3")
    a("s_and_b32 s43, s40, 1")
    srd(a, g.sB0_srd, sWG, D*F*2)
    srd(a, g.sB1_srd, sWU, D*F*2)
    a(f"s_lshl_b32 s30, s{g.sW}, 6")
    a("v_add_u32 v14, s30, v1")
    a("s_mul_i32 s30, s41, " + str(20*3456))
    a("s_mul_i32 s31, s43, " + str(14*128))
    a("s_add_u32 s30, s30, s31")
    for rep in range(2):
        a(f"v_add_u32 v15, {256*rep}, v14")
        a("v_mul_u32_u24 v16, 4682, v15")
        a("v_lshrrev_b32 v16, 16, v16")
        a("v_mul_u32_u24 v17, 14, v16")
        a("v_sub_u32 v17, v15, v17")
        a("v_mul_u32_u24 v16, 3456, v16")
        a("v_lshl_add_u32 v16, v17, 7, v16")
        a("v_cmp_gt_u32 vcc, 280, v15")
        a("v_mov_b32 v17, 0x7ffffff0")
        a("s_nop 0")
        a("v_cndmask_b32 v16, v17, v16, vcc")
        if rep == 1:
            a(f"s_cmp_lg_u32 s{g.sW}, 0")
            a(f"s_cbranch_scc1 {L}")
        touch(a, g.sB0_srd, 16, "s30", 240)
        touch(a, g.sB1_srd, 16, "s30", 241)
    a(f"{L}:")

def wd_wo_warm(a):
    g = G; b = sIDX
    L = a.label("wdw")
    srd(a, 8, sWD, F*D*2)
    a(f"s_mul_i32 s30, s{b}, {68*128}")
    a("v_lshlrev_b32 v15, 7, v1")
    a(f"s_cmp_ge_u32 s{g.sW}, 2")
    a(f"s_cbranch_scc1 {L}_wo")
    a(f"s_lshl_b32 s31, s{g.sW}, 13")
    a("s_add_u32 s30, s30, s31")
    touch(a, 8, 15, "s30", 242)
    a(f"s_branch {L}")
    a(f"{L}_wo:")
    srd(a, 8, sWO, D*D*2)
    a(f"s_mul_i32 s30, s{b}, {25*128}")
    touch(a, 8, 15, "s30", 243)
    a(f"{L}:")

def phase_GU(a, rnd, st0, mainprio, epiprio):
    g = G
    b = sIDX
    L = a.label("gu")
    a(f"s_and_b32 s40, s{b}, 7")
    a(f"s_lshr_b32 s41, s{b}, 3")
    if rnd: a("s_add_u32 s41, s41, 32")
    a("s_lshr_b32 s42, s40, 1")
    a("s_and_b32 s43, s40, 1")
    a("s_lshr_b32 s45, s41, 2")
    a("s_sub_u32 s46, 14, s43")
    a("s_cmp_ge_u32 s45, s46")
    a(f"s_cbranch_scc1 {L}_done")
    srd(a, g.sA_srd, sX, S*D*2)
    srd(a, g.sB0_srd, sWG, D*F*2)
    srd(a, g.sB1_srd, sWU, D*F*2)
    srd(a, 16, sWS, 0x10000)
    a("s_mul_i32 s46, s43, 14")
    a("s_add_u32 s45, s45, s46")
    a("s_lshl_b32 s44, s42, 2")
    a("s_and_b32 s46, s41, 3")
    a("s_add_u32 s44, s44, s46")
    a(f"s_mul_i32 s{g.sA}, s44, {128*1280}")
    a(f"s_lshl_b32 s{g.sB0}, s45, 7")
    rot_value(a, 46, 41, 1, 3, 10)
    rot_setup(a, 10, 128, 3456, 46)
    gemm_setup_dma(a, 1280, 3456)
    ring = Ring(2, 10, dB1=0)
    gemm_prologue_dma(a, ring, 1280, 3456)
    gemm_setup_reads(a, 2)
    stamp(a, st0)
    a(f"s_setprio {mainprio}")
    gemm_main(a, 2, 10, True, 1280, 3456, prologue_done=True, dB1=0)
    a(f"s_setprio {epiprio}")
    stamp(a, st0 + 1)
    a("s_lshl_b32 s46, s44, 7")
    a("s_add_u32 s47, s45, 30")
    a("s_add_u32 s48, s45, 57")
    a("s_lshl_b32 s49, s45, 6")
    a("s_add_u32 s50, s49, 3648")
    a("s_add_u32 s49, s49, 1920")
    ln_wait(a, 44, 47, 48)
    R = 132
    ln_load_T(a, 46, 49, 50, R)
    srd(a, 8, sWS, 432*GS, H4_OFF)
    a("s_lshl_b32 s30, s45, 4")
    a(f"s_lshl_b32 s31, s{g.sWn}, 3")
    a("s_add_u32 s30, s30, s31")
    a("s_lshl_b32 s30, s30, 14")
    a(f"s_lshl_b32 s31, s{g.sWm}, 6")
    a("s_add_u32 s31, s31, s46")
    a("s_lshl_b32 s31, s31, 3")
    a("s_add_u32 s51, s30, s31")
    a("v_lshrrev_b32 v14, 5, v1")
    a("v_lshlrev_b32 v14, 14, v14")
    a("v_and_b32 v15, 31, v1")
    a("v_lshl_add_u32 v14, v15, 3, v14")
    a("s_waitcnt vmcnt(0)")
    stamp(a, st0 + 2)
    k = 0
    for u in range(2):
        a(f"v_mul_f32 v16, {f32(-LOG2E)}, v{R+2*u}")
        a(f"v_mul_f32 v17, {f32(-LOG2E)}, v{R+2*u+1}")
        for aa in range(4):
            ga = g.ACC + 16*(2*u) + 4*aa
            ua = g.ACC + 16*(2*u + 1) + 4*aa
            cg_ = R + 4 + 4*aa
            cu_ = R + 4 + 16 + 4*aa
            t0 = 200 + 12*(k & 1); k += 1
            for b_ in range(4):
                a(f"v_mul_f32 v{t0+b_}, v16, v{cg_+b_}")
                a(f"v_mul_f32 v{t0+4+b_}, v{R+2*u}, v{cu_+b_}")
            for b_ in range(4):
                a(f"v_fma_f32 v{t0+b_}, v{ga+b_}, v17, -v{t0+b_}")
                a(f"v_fma_f32 v{t0+4+b_}, v{ua+b_}, v{R+2*u+1}, -v{t0+4+b_}")
            for b_ in range(4):
                a(f"v_exp_f32 v{t0+b_}, v{t0+b_}")
            for b_ in range(4):
                a(f"v_add_f32 v{t0+b_}, 1.0, v{t0+b_}")
            for b_ in range(4):
                a(f"v_rcp_f32 v{t0+b_}, v{t0+b_}")
            a("s_nop 0")
            for b_ in range(4):
                a(f"v_mul_f32 v{t0+b_}, v{t0+b_}, v{t0+4+b_}")
            a(f"v_cvt_pk_bf16_f32 v{t0+8}, v{t0}, v{t0+1}")
            a(f"v_cvt_pk_bf16_f32 v{t0+9}, v{t0+2}, v{t0+3}")
            a(f"s_add_u32 s30, s51, {2*aa*GS + 256*u}")
            a(f"buffer_store_dwordx2 v[{t0+8}:{t0+9}], v14, s[8:11], s30 offen{SC}")
    if not MULTI:
        a(f"s_add_u32 s30, s44, {C_H}")
        a("s_lshl_b32 s30, s30, 7")
        a("v_mov_b32 v14, s30")
        signal(a, g.sW, 14, 15, 30, 1)
    else:
        a("s_waitcnt vmcnt(0)")
    stamp(a, st0 + 3)
    a("s_barrier")
    a(f"{L}_done:")

def a1_touches(a):
    g = G
    a(f"s_and_b32 s40, s{sIDX}, 7")
    a(f"s_lshr_b32 s41, s{sIDX}, 3")
    a("s_lshr_b32 s42, s40, 1")
    a("s_and_b32 s43, s40, 1")
    srd(a, 4, sX, S*D*2)
    srd(a, 8, sWQKV, D*3*D*2)
    a(f"s_lshl_b32 s30, s{g.sW}, 6")
    a("v_add_u32 v14, s30, v1")
    a("v_mul_u32_u24 v15, 6554, v14")
    a("v_lshrrev_b32 v15, 16, v15")
    a("v_mul_u32_u24 v16, 10, v15")
    a("v_sub_u32 v16, v14, v16")
    a("v_mul_u32_u24 v15, 1280, v15")
    a("v_lshl_add_u32 v15, v16, 7, v15")
    a("v_cmp_gt_u32 vcc, 160, v14")
    a("v_mov_b32 v16, 0x7ffffff0")
    a("s_lshl_b32 s30, s42, 9")
    a("s_lshl_b32 s31, s41, 4")
    a("s_add_u32 s30, s30, s31")
    a("v_cndmask_b32 v15, v16, v15, vcc")
    a("s_mul_i32 s30, s30, 1280")
    touch(a, 4, 15, "s30", 240)
    a("v_lshrrev_b32 v15, 4, v14")
    a("v_mul_u32_u24 v15, 3840, v15")
    a("v_and_b32 v16, 15, v14")
    a("v_lshl_add_u32 v15, v16, 7, v15")
    a("s_mul_i32 s30, s41, " + str(20*3840))
    a("s_lshl_b32 s31, s43, 11")
    a("s_add_u32 s30, s30, s31")
    touch(a, 8, 15, "s30", 241)
    a(f"s_add_u32 s30, s30, {16*3840}")
    a("v_cmp_gt_u32 vcc, 64, v14")
    a("v_mov_b32 v16, 0x7ffffff0")
    a("s_nop 0")
    a("v_cndmask_b32 v15, v16, v15, vcc")
    touch(a, 8, 15, "s30", 242)

def wait_kv_all(a):
    if MULTI: return
    wait_ready(a, 14, 30)
    a("s_and_b32 s30, s2, 7")
    a(f"s_add_u32 s30, s30, {C_KV}")
    a("s_lshl_b32 s30, s30, 7")
    a("v_mov_b32 v14, s30")
    a("v_mov_b32 v15, 40")
    wait_counters(a, 14, 15, 16, 30, 1)

def touch_gm(a, ngroups, rows_s, tag):
    g = G
    a(f"s_lshl_b32 s30, s{g.sW}, 6")
    a("v_add_u32 v14, s30, v1")
    a("v_lshrrev_b32 v15, 2, v14")
    a("v_lshlrev_b32 v15, 14, v15")
    a("v_and_b32 v16, 3, v14")
    a("v_lshl_add_u32 v15, v16, 7, v15")
    n = -(-ngroups // 64)
    a(f"s_mov_b32 s30, s{rows_s}")
    for i in range(n):
        touch(a, g.sA_srd, 15, "s30", 240 + (i & 7))
        if i + 1 < n: a(f"s_add_u32 s30, s30, {64*GS}")

def phase_B23(a):
    g = G
    b = sIDX
    a(f"s_and_b32 s40, s{b}, 7")
    a(f"s_lshr_b32 s41, s{b}, 3")
    a("s_sub_u32 s41, 31, s41")
    a("s_cmp_ge_u32 s41, 20")
    a("s_cbranch_scc1 L_b23_done")
    a("s_lshl_b32 s44, s40, 2")
    a("s_and_b32 s45, s41, 3")
    a("s_add_u32 s44, s44, s45")
    a("s_lshr_b32 s45, s41, 2")
    gemm_setup_reads(a, 1)
    gemm_setup_dma(a, 1280, 1280)
    gemm_setup_gm(a)
    srd(a, g.sA_srd, sWS, 432*GS, H4_OFF)
    srd(a, g.sB0_srd, sWD, F*D*2)
    srd(a, g.sB1_srd, sWD, F*D*2)
    a(f"s_lshl_b32 s{g.sA}, s44, 9")
    a(f"s_lshl_b32 s{g.sB0}, s45, 8")
    rot_value(a, 46, 41, 5, 7, 27)
    rot_setup(a, 27, 16*GS, 1280, 46)
    if not MULTI:
        wait_ready(a, 14, 30)
        a("s_lshr_b32 s30, s44, 1")
        a(f"s_add_u32 s30, s30, {C_H}")
        a("s_lshl_b32 s30, s30, 7")
        a("v_mov_b32 v14, s30")
        a("v_mov_b32 v15, 27")
        wait_counters(a, 14, 15, 16, 30, 1)
    stamp(a, 11)
    a("s_setprio 0")
    gemm_main(a, 1, 27, True, 1280, 1280, scA=SC, gm=True)
    a("s_setprio 2")
    stamp(a, 12)
    for r in range(32):
        z = g.ACC + r
        a(f"v_mul_f32 v14, {f32(-LOG2E)}, v{z}")
        a("v_exp_f32 v14, v14")
        a("s_nop 0")
        a("v_add_f32 v14, 1.0, v14")
        a("v_rcp_f32 v14, v14")
        a("s_nop 0")
        a(f"v_mul_f32 v{128+r}, v{z}, v14")
    a("s_barrier")
    srd(a, g.sA_srd, sWS, 160*GS, O4_OFF)
    srd(a, g.sB0_srd, sWO, D*D*2)
    srd(a, g.sB1_srd, sWO, D*D*2)
    a(f"s_lshl_b32 s{g.sA}, s44, 9")
    a(f"s_lshl_b32 s{g.sB0}, s45, 8")
    rot_value(a, 46, 41, 2, 3, 10)
    rot_setup(a, 10, 16*GS, 1280, 46)
    srd(a, 16, sX, S*D*2)
    a("s_lshl_b32 s51, s44, 6")
    a(f"s_lshl_b32 s52, s{g.sWm}, 5")
    a("s_add_u32 s51, s51, s52")
    a("v_and_b32 v160, 31, v1")
    a("v_add_u32 v160, s51, v160")
    a("v_mul_u32_u24 v160, 1280, v160")
    a("s_lshl_b32 s52, s45, 8")
    a(f"s_lshl_b32 s53, s{g.sWn}, 6")
    a("s_add_u32 s52, s52, s53")
    a("v_lshrrev_b32 v161, 5, v1")
    a("v_lshlrev_b32 v161, 3, v161")
    a("v_add3_u32 v160, v160, v161, s52")
    for v in range(2):
        for aa in range(4):
            a(f"buffer_load_dwordx2 v[{162+2*(4*v+aa)}:{163+2*(4*v+aa)}], v160, s[16:19], 0 offen offset:{128*v+16*aa}")
    if not MULTI:
        a(f"s_add_u32 s30, s40, {C_O}")
        a("s_lshl_b32 s30, s30, 7")
        a("v_mov_b32 v14, s30")
        a("v_mov_b32 v15, 32")
        wait_counters(a, 14, 15, 16, 30, 1)
    stamp(a, 13)
    gemm_main(a, 1, 10, True, 1280, 1280, scA=SC, gm=True)
    srd(a, 16, sOUT, S*D*2)
    k = 0
    for v in range(2):
        for aa in range(4):
            xr = 162 + 2*(4*v+aa)
            acc = g.ACC + 16*v + 4*aa
            gg = 128 + 16*v + 4*aa
            t0 = 14 + 6*(k & 1); k += 1
            a(f"v_lshlrev_b32 v{t0}, 16, v{xr}")
            a(f"v_and_b32 v{t0+1}, 0xffff0000, v{xr}")
            a(f"v_lshlrev_b32 v{t0+2}, 16, v{xr+1}")
            a(f"v_and_b32 v{t0+3}, 0xffff0000, v{xr+1}")
            for b_ in range(4):
                a(f"v_fmac_f32 v{t0+b_}, v{acc+b_}, v{gg+b_}")
            a(f"v_cvt_pk_bf16_f32 v{t0+4}, v{t0}, v{t0+1}")
            a(f"v_cvt_pk_bf16_f32 v{t0+5}, v{t0+2}, v{t0+3}")
            a(f"buffer_store_dwordx2 v[{t0+4}:{t0+5}], v160, s[16:19], 0 offen offset:{128*v+16*aa}")
    a("s_waitcnt vmcnt(0)")
    a("L_b23_done:")

def build():
    hdr = open("cdna_kernels/" + NAME + ".s.ref").read().split("; Override launch geometry")[0]
    out = hdr
    LDS = 81920
    kernels = []
    if MULTI:
        def b0(a): phase_B0(a); wd_wo_warm(a); a("s_waitcnt vmcnt(0)")
        def gu0(a): phase_GU(a, 0, 1, 0, 0)
        def gu1(a): phase_GU(a, 1, 1, 0, 0)
        for nm, fn in (("b0", b0), ("a1", phase_A1), ("gu0", gu0), ("gu1", gu1), ("a2", phase_A2), ("b23", phase_B23)):
            a = Asm(); a.uid = 1000*len(kernels)
            k = nm + "_kernel"
            a(f"{k}:")
            a("s_cmp_ge_u32 s2, 256")
            a(f"s_cbranch_scc1 L_{nm}_exit")
            a(f"s_mov_b32 s{sIDX}, s2")
            stamp(a, 0)
            prologue(a)
            fn(a)
            if nm in os.environ.get("PROFK", "").split(","):
                stamp_flush(a, 14, G.sW)
            a(f"L_{nm}_exit:")
            a("s_endpgm")
            kernels.append((k, a.text()))
            out += f"; @launch kernel={k} grid=(256,1,1) block=(256,1,1) lds={LDS}\n"
    else:
        a = Asm()
        k = NAME + "_kernel"
        a(f"{k}:")
        a("s_cmp_ge_u32 s2, 512")
        a("s_cbranch_scc1 L_exit")
        stamp(a, 0)
        prologue(a)
        a("s_cmp_ge_u32 s2, 256")
        a("s_cbranch_scc1 L_roleB")
        a(f"s_mov_b32 s{sIDX}, s2")
        a("s_setprio 1")
        zero_counters(a)
        phase_A1(a)
        a("s_barrier")
        phase_GU(a, 0, 8, 1, 1)
        phase_A2(a)
        stamp_flush(a, 14, G.sW)
        a("s_endpgm")
        a("L_roleB:")
        a(f"s_sub_u32 s{sIDX}, s2, 256")
        a("s_setprio 2")
        phase_B0(a)
        stamp(a, 1)
        wd_wo_warm(a)
        wait_kv_all(a)
        stamp(a, 2)
        phase_GU(a, 1, 3, 0, 2)
        phase_B23(a)
        stamp_flush(a, 14, G.sW)
        a("L_exit:")
        a("s_endpgm")
        kernels.append((k, a.text()))
        out += f"; @launch grid=(512,1,1) block=(256,1,1) lds={LDS}\n"
    out += '.amdgcn_target "amdgcn-amd-amdhsa--gfx950"\n.text\n'
    descs = ""
    for k, txt in kernels:
        out += f".globl {k}\n.p2align 8\n.type {k},@function\n" + txt
        descs += kernel_desc(k, 256)
    out += '.section .rodata,"a"\n' + descs
    return out

if __name__ == "__main__":
    path = sys.argv[1] if len(sys.argv) > 1 else "cdna_kernels/" + NAME + ".s"
    open(path, "w").write(build())
    print("wrote", path)
```

```python
import sys, os, struct
from asmlib import *

NAME = "recurrent_scan__softmax_full_mha__glu_gated_glu__prompt"
KA_X, KA_WQKV, KA_WO, KA_BX, KA_WG, KA_WU, KA_WD, KA_OUT, KA_DBG, KA_WS = 0, 8, 16, 24, 32, 40, 48, 56, 64, 72
S, D, F, H, DH = 2048, 640, 1728, 32, 20
ST_OFF = 0
CS_OFF = 0x8000
CNT_OFF = 0x10000
ONES_OFF = 0x20000
Q4_OFF = 0x100000
K4_OFF = 0x380000
V_OFF = 0x600000
H4_OFF = 0x880000
O4_OFF = 0xF40000
WS_USED = 0x11C0000
GS = 16384
GS8 = 32768
VHS = 64 * 1280
LOG2E = 1.4426950408889634
QSCALE = (DH ** -0.5) * LOG2E
C_KV, C_ST, C_H, C_O, C_A1, C_N = 0, 40, 168, 184, 192, 448
A_GU = int(os.environ.get("A_GU", "0"))
BPRIO = int(os.environ.get("BPRIO", "0"))
OSLEEP = int(os.environ.get("OSLEEP", "4"))
HSLEEP = int(os.environ.get("HSLEEP", "8"))
DPRIO = int(os.environ.get("DPRIO", "0"))
APRIO = int(os.environ.get("APRIO", "1"))
MULTI = int(os.environ.get("MULTI", "0"))
PROF = int(os.environ.get("PROF", "0"))
PROF_OFF = 0x1800000
SC = " sc1"

def f32(x):
    return "0x%08x" % struct.unpack("<I", struct.pack("<f", x))[0]

sX, sWQKV, sWO, sWG, sWU, sWD, sOUT, sDBG, sWS = 60, 62, 64, 66, 68, 70, 72, 74, 76
sCNT = 56

def stamp(a, idx, force=False):
    if not PROF: return
    if (os.environ.get("A1ST") or os.environ.get("A1S0")) and 4 <= idx <= 12 and not force: return
    a("s_memtime s[98:99]")
    a("s_waitcnt lgkmcnt(0)")
    a(f"s_mov_b32 s{80+idx}, s98")
def stamp_flush(a, n, wave_s):
    if not PROF: return
    a("s_memtime s[96:97]")
    a("s_waitcnt lgkmcnt(0)")
    a("s_mov_b32 s100, s96")
    a("s_memrealtime s[98:99]")
    a("s_waitcnt lgkmcnt(0)")
    a("s_lshl_b32 s96, s2, 2")
    a(f"s_add_u32 s96, s96, s{wave_s}")
    a("s_lshl_b32 s96, s96, 7")
    a(f"s_add_u32 s96, s96, {PROF_OFF}")
    a(f"s_add_u32 s94, s{sWS}, s96")
    a(f"s_addc_u32 s95, s{sWS+1}, 0")
    a("v_mov_b32 v250, 0")
    for i in range(n):
        a(f"v_mov_b32 v251, s{80+i}")
        a(f"global_store_dword v250, v251, s[94:95] offset:{4*i}")
    a("v_mov_b32 v251, s100")
    a("global_store_dword v250, v251, s[94:95] offset:56")
    a("v_mov_b32 v251, s98")
    a("global_store_dword v250, v251, s[94:95] offset:60")
    a("v_mov_b32 v251, s101")
    a("global_store_dword v250, v251, s[94:95] offset:64")
    a("s_getreg_b32 s96, hwreg(HW_REG_XCC_ID)")
    a("v_mov_b32 v251, s96")
    a("global_store_dword v250, v251, s[94:95] offset:68")
    a("s_waitcnt vmcnt(0)")

def load_ptrs(a):
    a(f"s_load_dwordx4 s[{sX}:{sX+3}], s[0:1], {KA_X}")
    a(f"s_load_dwordx2 s[{sWO}:{sWO+1}], s[0:1], {KA_WO}")
    a(f"s_load_dwordx4 s[68:71], s[0:1], {KA_WU}")
    a(f"s_load_dwordx2 s[{sWG}:{sWG+1}], s[0:1], {KA_WG}")
    a(f"s_load_dwordx4 s[72:75], s[0:1], {KA_OUT}")
    a(f"s_load_dwordx2 s[{sWS}:{sWS+1}], s[0:1], {KA_WS}")

def cnt_srd(a):
    srd(a, sCNT, sWS, C_N * 128, CNT_OFF)

sRDY = 78
vPL = 238
def wait_ready(a, vt=None, st=30, sleep=4):
    if MULTI: return
    L = a.label("rdy"); Ld = a.label("rdyd")
    a(f"s_cmp_lg_u32 s{sRDY}, 0")
    a(f"s_cbranch_scc1 {Ld}")
    a(f"v_mov_b32 v{vPL}, 0")
    a(f"s_mov_b32 s30, 0x40000")
    a(f"{L}:")
    a(f"global_load_dword v{vPL+1}, v{vPL}, s[{sDBG}:{sDBG+1}] sc1")
    a("s_waitcnt vmcnt(0)")
    a(f"v_readfirstlane_b32 s{sRDY}, v{vPL+1}")
    a(f"s_cmp_lg_u32 s{sRDY}, 0")
    a(f"s_cbranch_scc1 {Ld}")
    a(f"s_sleep {sleep}")
    a("s_sub_u32 s30, s30, 1")
    a("s_cmp_lg_u32 s30, 0")
    a(f"s_cbranch_scc1 {L}")
    a(f"{Ld}:")

def wait_cnt(a, idx_list, target, sleep=4, wave0=False):
    if MULTI: return
    L = a.label("wc"); Ld = a.label("wcd")
    if wave0:
        a(f"s_cmp_lg_u32 s{G.sW}, 0")
        a(f"s_cbranch_scc1 {Ld}")
    a(f"s_lshl_b32 s31, s{idx_list[0]}, 7")
    a(f"v_mov_b32 v{vPL}, s31")
    if len(idx_list) == 2:
        a(f"s_lshl_b32 s31, s{idx_list[1]}, 7")
        a(f"v_writelane_b32 v{vPL}, s31, 1")
    a(f"s_mov_b32 exec_lo, {(1 << len(idx_list)) - 1}")
    a("s_mov_b32 exec_hi, 0")
    a("s_mov_b32 s30, 0x40000")
    a(f"{L}:")
    a(f"buffer_load_dword v{vPL+1}, v{vPL}, s[{sCNT}:{sCNT+3}], 0 offen sc1")
    a("s_waitcnt vmcnt(0)")
    a(f"v_cmp_gt_u32 vcc, {target}, v{vPL+1}")
    a("s_nop 4")
    a(f"s_cbranch_vccz {Ld}_x")
    a(f"s_sleep {sleep}")
    a("s_sub_u32 s30, s30, 1")
    a("s_cmp_lg_u32 s30, 0")
    a(f"s_cbranch_scc1 {L}")
    a(f"{Ld}_x:")
    a("s_mov_b64 exec, -1")
    a(f"{Ld}:")

def signal(a, wave_s, vaddr, vt, st, nl):
    if MULTI:
        return
    L = a.label("sg")
    a("s_waitcnt vmcnt(0)")
    a("s_barrier")
    a(f"s_cmp_lg_u32 s{wave_s}, 0")
    a(f"s_cbranch_scc1 {L}")
    a(f"s_mov_b64 s[{st}:{st+1}], exec")
    a(f"s_mov_b32 exec_lo, {(1<<nl)-1}")
    a("s_mov_b32 exec_hi, 0")
    a(f"v_mov_b32 v{vt}, 1")
    a(f"buffer_atomic_add v{vt}, v{vaddr}, s[{sCNT}:{sCNT+3}], 0 offen sc1")
    a(f"s_mov_b64 exec, s[{st}:{st+1}]")
    a(f"{L}:")

class G:
    vAd, vBd = 2, 3
    vAr, vArH = 4, 8
    vBr, vBrH = 12, 13
    vB0, vB0H, vB1, vB1H = 228, 229, 230, 231
    CS, ONES = 208, 224
    T = 14
    X, Y = 32, 48
    SETS = [32, 48, 240]
    ACC = 64
    sA_srd, sB0_srd, sB1_srd, sO_srd = 4, 8, 12, 16
    sA, sB0, sB1, sLW, sCnt, sT = 20, 21, 22, 23, 24, 25
    sAb, sAe, sBb, sBe = 36, 37, 38, 39
    sW, sWm, sWn = 26, 27, 28

def wave_ids(a):
    g = G
    a("v_lshrrev_b32 v1, 6, v0")
    a("s_nop 0")
    a(f"v_readfirstlane_b32 s{g.sW}, v1")
    a("v_and_b32 v1, 63, v0")
    a(f"s_lshr_b32 s{g.sWm}, s{g.sW}, 1")
    a(f"s_and_b32 s{g.sWn}, s{g.sW}, 1")
    a(f"s_lshl_b32 s{g.sLW}, s{g.sW}, 10")

def gemm_setup_reads(a, MU, swap=False):
    g = G; t = g.T
    a(f"v_and_b32 v{t}, 31, v1")
    a(f"v_lshrrev_b32 v{t+1}, 5, v1")
    a(f"v_bfe_u32 v{t+2}, v{t}, 1, 3")
    a(f"v_xor_b32 v{t+2}, v{t+2}, v{t+1}")
    a(f"s_mul_i32 s{g.sT}, s{g.sWm}, {32*MU}")
    a(f"v_add_u32 v{t+3}, s{g.sT}, v{t}")
    a(f"v_lshlrev_b32 v{t+3}, 7, v{t+3}")
    for s in range(4):
        a(f"v_xor_b32 v{t+4}, {2*s}, v{t+2}")
        a(f"v_lshl_add_u32 v{g.vAr+s}, v{t+4}, 4, v{t+3}")
        a(f"v_add_u32 v{g.vArH+s}, 0x10000, v{g.vAr+s}")
    a(f"v_lshrrev_b32 v{t}, 4, v1")
    a(f"v_and_b32 v{t+1}, 1, v{t}")
    a(f"v_lshrrev_b32 v{t}, 1, v{t}")
    a(f"v_and_b32 v{t+2}, 15, v1")
    a(f"v_lshrrev_b32 v{t+3}, 2, v{t+2}")
    a(f"v_lshl_add_u32 v{t+3}, v{t}, 3, v{t+3}")
    a(f"v_lshlrev_b32 v{t+3}, 7, v{t+3}")
    a(f"v_bfe_u32 v{t+4}, v{t+2}, 1, 1")
    a(f"v_lshl_add_u32 v{t+4}, v{t+1}, 1, v{t+4}")
    a(f"s_lshl_b32 s{g.sT}, s{g.sWn}, 2")
    a(f"v_add_u32 v{t+4}, s{g.sT}, v{t+4}")
    a(f"v_bfe_u32 v{t+5}, v{t+2}, 3, 1")
    a(f"v_lshlrev_b32 v{t+5}, 2, v{t+5}")
    a(f"v_xor_b32 v{t+4}, v{t+4}, v{t+5}")
    a(f"v_lshl_add_u32 v{t+3}, v{t+4}, 4, v{t+3}")
    a(f"v_and_b32 v{t+5}, 1, v{t+2}")
    a(f"v_lshl_add_u32 v{g.vBr}, v{t+5}, 3, v{t+3}")
    if swap:
        a(f"s_lshl_b32 s{g.sT}, s{g.sWm}, 13")
        a(f"v_add_u32 v{g.vB0}, s{g.sT}, v{g.vBr}")
        a(f"s_xor_b32 s{g.sT}, s{g.sT}, 0x2000")
        a(f"v_add_u32 v{g.vB1}, s{g.sT}, v{g.vBr}")
    else:
        a(f"v_mov_b32 v{g.vB0}, v{g.vBr}")
        a(f"v_add_u32 v{g.vB1}, 0x2000, v{g.vBr}")
    a(f"v_add_u32 v{g.vB0H}, 0x10000, v{g.vB0}")
    a(f"v_add_u32 v{g.vB1H}, 0x10000, v{g.vB1}")
    if swap:
        a(f"v_and_b32 v{t}, 15, v1")
        a(f"v_bfe_u32 v{t+1}, v1, 4, 1")
        a(f"v_cmp_eq_u32 vcc, v{t}, v{t+1}")
        a(f"v_mov_b32 v{t+2}, 0x3f803f80")
        a("s_nop 0")
        a(f"v_cndmask_b32 v{g.ONES}, 0, v{t+2}, vcc")
        for r in range(1, 4):
            a(f"v_mov_b32 v{g.ONES+r}, v{g.ONES}")

def gemm_setup_dma(a, strideA, strideB):
    g = G; t = g.T
    a(f"v_lshrrev_b32 v{t}, 3, v1")
    a(f"s_lshl_b32 s{g.sT}, s{g.sW}, 3")
    a(f"v_add_u32 v{t}, s{g.sT}, v{t}")
    a(f"v_lshrrev_b32 v{t+1}, 4, v1")
    a(f"s_lshl_b32 s{g.sT}, s{g.sWn}, 2")
    a(f"v_add_u32 v{t+2}, s{g.sT}, v{t+1}")
    a(f"v_and_b32 v{t+3}, 7, v1")
    a(f"v_xor_b32 v{t+2}, v{t+2}, v{t+3}")
    a(f"v_lshlrev_b32 v{t+2}, 4, v{t+2}")
    a(f"s_mov_b32 s{g.sT}, {strideA}")
    a(f"v_mad_u32_u24 v{g.vAd}, v{t}, s{g.sT}, v{t+2}")
    a(f"v_and_b32 v{t+1}, 1, v{t+1}")
    a(f"v_lshlrev_b32 v{t+1}, 2, v{t+1}")
    a(f"v_xor_b32 v{t+2}, v{t+1}, v{t+3}")
    a(f"v_lshlrev_b32 v{t+2}, 4, v{t+2}")
    a(f"s_mov_b32 s{g.sT}, {strideB}")
    a(f"v_mad_u32_u24 v{g.vBd}, v{t}, s{g.sT}, v{t+2}")

def gemm_setup_gm(a, gm):
    g = G; t = g.T
    if gm == 4:
        a(f"v_lshrrev_b32 v{t}, 5, v1")
        a(f"s_lshl_b32 s{g.sT}, s{g.sW}, 1")
        a(f"v_add_u32 v{t}, s{g.sT}, v{t}")
        a(f"v_lshlrev_b32 v{t}, 14, v{t}")
        a(f"v_and_b32 v{t+1}, 31, v1")
        a(f"v_lshl_add_u32 v{g.vAd}, v{t+1}, 4, v{t}")
        a(f"v_lshrrev_b32 v{t}, 5, v1")
        a(f"v_lshlrev_b32 v{t}, 10, v{t}")
        a(f"s_lshl_b32 s{g.sT}, s{g.sWm}, 5")
        a(f"v_add_u32 v{t+1}, s{g.sT}, v{t+1}")
        a(f"v_lshl_add_u32 v{g.vAr}, v{t+1}, 3, v{t}")
    else:
        a(f"s_lshl_b32 s{g.sT}, s{g.sW}, 15")
        a(f"v_lshlrev_b32 v{t}, 4, v1")
        a(f"v_add_u32 v{g.vAd}, s{g.sT}, v{t}")
        a(f"v_lshrrev_b32 v{t}, 5, v1")
        a(f"v_lshlrev_b32 v{t}, 10, v{t}")
        a(f"v_and_b32 v{t+1}, 31, v1")
        a(f"s_lshl_b32 s{g.sT}, s{g.sWm}, 5")
        a(f"v_add_u32 v{t+1}, s{g.sT}, v{t+1}")
        a(f"v_lshl_add_u32 v{g.vAr}, v{t+1}, 4, v{t}")

class Ring:
    def __init__(self, MU, nst, gm=False, dB1=128):
        self.MU, self.nst, self.gm, self.dB1 = MU, nst, gm, dB1
        self.pieces = []
        for n in range(nst):
            self.pieces.append(('A', n)); self.pieces.append(('B', n))
        if MU == 2:
            self.cap = 5
        else:
            self.cap = 6
    def base(self, kind, n):
        if self.MU == 2:
            q = 2*n + (kind == 'B')
            return (q % 5) * 16384
        return (n % 3) * 24576 + (8192 if kind == 'B' else 0)
    def ninstr(self, kind):
        return 2*self.MU if kind == 'A' else 4

def dma_instrs(ring, kind, n, strideA, strideB, scA):
    g = G; out = []
    base = ring.base(kind, n)
    if kind == 'A':
        nI = 2 if ring.gm else 2*ring.MU
        stepI = {4: 8*GS, 8: 4*GS8}.get(ring.gm, 32*strideA)
        stepP = {4: 16*GS, 8: 8*GS8}.get(ring.gm, 128)
        for t in range(nI):
            grp = [f"s_add_u32 m0, s{g.sLW}, {base + t*4096}",
                   f"s_add_u32 s{g.sT}, s{g.sA}, {t*stepI}",
                   f"buffer_load_dwordx4 v{g.vAd}, s[{g.sA_srd}:{g.sA_srd+3}], s{g.sT} offen{scA} lds"]
            if t == nI - 1:
                grp += [f"s_add_u32 s{g.sA}, s{g.sA}, {stepP}",
                        f"s_cmp_eq_u32 s{g.sA}, s{g.sAe}",
                        f"s_cselect_b32 s{g.sA}, s{g.sAb}, s{g.sA}"]
            out.append(grp)
    else:
        for t in range(4):
            p, hh = t >> 1, t & 1
            srdn = g.sB0_srd if p == 0 else g.sB1_srd
            grp = [f"s_add_u32 m0, s{g.sLW}, {base + p*8192 + hh*4096}",
                   f"s_add_u32 s{g.sT}, s{g.sB0}, {32*hh*strideB + p*ring.dB1}",
                   f"buffer_load_dwordx4 v{g.vBd}, s[{srdn}:{srdn+3}], s{g.sT} offen lds"]
            if t == 3:
                grp += [f"s_add_u32 s{g.sB0}, s{g.sB0}, {64*strideB}",
                        f"s_cmp_eq_u32 s{g.sB0}, s{g.sBe}",
                        f"s_cselect_b32 s{g.sB0}, s{g.sBb}, s{g.sB0}"]
            out.append(grp)
    return out

def rot_setup(a, nst, stepA, strideB, rot_s):
    g = G
    a(f"s_mov_b32 s{g.sAb}, s{g.sA}")
    a(f"s_add_u32 s{g.sAe}, s{g.sA}, {nst*stepA}")
    a(f"s_mul_i32 s{g.sT}, s{rot_s}, {stepA}")
    a(f"s_add_u32 s{g.sA}, s{g.sA}, s{g.sT}")
    a(f"s_mov_b32 s{g.sBb}, s{g.sB0}")
    a(f"s_add_u32 s{g.sBe}, s{g.sB0}, {nst*64*strideB}")
    a(f"s_mul_i32 s{g.sT}, s{rot_s}, {64*strideB}")
    a(f"s_add_u32 s{g.sB0}, s{g.sB0}, s{g.sT}")

def rot_value(a, dst, e_s, m1, m2, nst, sh=2):
    a(f"s_lshr_b32 s{dst}, s{e_s}, {sh}")
    a(f"s_mul_i32 s{dst}, s{dst}, {m1}")
    a(f"s_and_b32 s{G.sT}, s{e_s}, {(1 << sh) - 1}")
    a(f"s_mul_i32 s{G.sT}, s{G.sT}, {m2}")
    a(f"s_add_u32 s{dst}, s{dst}, s{G.sT}")
    mg = (1 << 16) // nst + 1
    a(f"s_mul_i32 s{G.sT}, s{dst}, {mg}")
    a(f"s_lshr_b32 s{G.sT}, s{G.sT}, 16")
    a(f"s_mul_i32 s{G.sT}, s{G.sT}, {nst}")
    a(f"s_sub_u32 s{dst}, s{dst}, s{G.sT}")

def read_instrs(ring, n, s, dst):
    g = G; out = []
    MU = ring.MU
    ab = ring.base('A', n); bb = ring.base('B', n)
    if ring.gm == 4:
        for t in range(2):
            out.append(f"ds_read_b64 v[{dst+2*t}:{dst+2*t+1}], v{g.vAr} offset:{ab + (4*s + t)*512}")
    if ring.gm == 8:
        out.append(f"ds_read_b128 v[{dst}:{dst+3}], v{g.vAr} offset:{ab + 2*s*1024}")
    for u in range(0 if ring.gm else MU):
        off = ab + u*4096
        reg = g.vAr + s
        if off >= 65536: off -= 65536; reg = g.vArH + s
        out.append(f"ds_read_b128 v[{dst+4*u}:{dst+4*u+3}], v{reg} offset:{off}")
    for v in range(2):
        for t in range(2):
            r = dst + 8 + 4*v + 2*t
            off = bb + (16*s + 4*t)*128
            reg = g.vB0 if v == 0 else g.vB1
            if off >= 65536: off -= 65536; reg = (g.vB0H if v == 0 else g.vB1H)
            out.append(f"ds_read_b64_tr_b16 v[{r}:{r+1}], v{reg} offset:{off}")
    return out

def mfma_instrs(MU, src, transposed, first=False):
    g = G; out = []
    for u in range(MU):
        for v in range(2):
            acc = g.ACC + 16*(2*u + v)
            A = f"v[{src+4*u}:{src+4*u+3}]"; B = f"v[{src+8+4*v}:{src+8+4*v+3}]"
            x, y = (B, A) if transposed else (A, B)
            c = "0" if first else f"v[{acc}:{acc+15}]"
            out.append(f"v_mfma_f32_32x32x16_bf16 v[{acc}:{acc+15}], {x}, {y}, {c}")
    return out

class VM:
    def __init__(self): self.ops = []
    def add(self, tag): self.ops.append(tag)
    def after(self, pred):
        last = -1
        for i, t in enumerate(self.ops):
            if pred(t): last = i
        return len(self.ops) - 1 - last

def emit_groups(a, groups, vm):
    for tag, grp in groups:
        for l in grp: a(l)
        vm.add(tag)

def emit_mixed(a, mf, groups, vm):
    n = len(mf); gi = 0
    for k, m in enumerate(mf):
        a(m)
        want = (len(groups) * (k + 1) + n - 1) // n
        while gi < want:
            emit_groups(a, [groups[gi]], vm); gi += 1

def piece_groups(ring, q, strideA, strideB, scA):
    k, n = ring.pieces[q]
    return [(q, grp) for grp in dma_instrs(ring, k, n, strideA, strideB, scA)]

def gemm_prologue_dma(a, ring, strideA, strideB, scA="", vm=None, npieces=None):
    vm = vm or VM()
    for q in range(npieces if npieces is not None else min(ring.cap, len(ring.pieces))):
        emit_groups(a, piece_groups(ring, q, strideA, strideB, scA), vm)
    return vm

def gemm_main(a, MU, nst, transposed, strideA, strideB, scA="", hook=None, vm=None, npro=None, stampbase=None, gm=False, dB1=128, cs=False, after_first_barrier=None):
    g = G
    ring = Ring(MU, nst, gm, dB1)
    P = ring.pieces
    cap = min(ring.cap, len(P))
    if vm is None:
        npro = cap
        vm = gemm_prologue_dma(a, ring, strideA, strideB, scA)
    pending = []
    for q in range(npro, cap):
        pending += piece_groups(ring, q, strideA, strideB, scA)
    issued = cap
    isp = lambda need: (lambda t: isinstance(t, int) and t <= need)
    SETS = g.SETS
    a(f"s_waitcnt vmcnt({vm.after(isp(1))})")
    a("s_barrier")
    if after_first_barrier: after_first_barrier(a, vm)
    if stampbase is not None: stamp(a, stampbase)
    nr = {4: 2, 8: 1}.get(gm, MU) + 4
    T = 4*nst
    rd = lambda t: read_instrs(ring, t // 4, t % 4, SETS[t % 3])
    for l in rd(0): a(l)
    for l in rd(1): a(l)
    def mfs(src, first):
        m = mfma_instrs(MU, src, transposed, first)
        if cs:
            B0 = f"v[{src+8}:{src+11}]"; ON = f"v[{g.ONES}:{g.ONES+3}]"
            c = "0" if first else f"v[{g.CS}:{g.CS+3}]"
            m.insert(2, f"v_mfma_f32_16x16x32_bf16 v[{g.CS}:{g.CS+3}], {B0}, {ON}, {c}")
        return m
    lg = 2*nr
    for t in range(T):
        n, s = divmod(t, 4)
        if s == 0 and hook: hook(a, n, vm)
        m = mfs(SETS[t % 3], t == 0)
        reads = rd(t + 2) if t + 2 < T else []
        bar = (s == 2 and n + 1 < nst)
        keep = nr if t + 1 < T else 0
        a(f"s_waitcnt lgkmcnt({keep})")
        left = {2: 4, 3: 3, 0: 2, 1: 1}[s] if not (n == 0 and t < 2) else {0: 2, 1: 1}[s]
        if not bar:
            k = -(-len(pending) // left)
            grp, pending = pending[:k], pending[k:]
        else:
            grp = []
        fill = [[l] for l in reads]
        nm = len(m)
        first_slot = 0
        if bar:
            a(m[0]); a(m[1])
            assert not pending
            need = 2*(n + 1) + 1
            a(f"s_waitcnt vmcnt({vm.after(isp(need))}) lgkmcnt(0)")
            a("s_barrier")
            if stampbase is not None and os.environ.get("A1ST"): stamp(a, 4 + n, True)
            newp = []
            for q in range(issued, min(issued + 2, len(P))):
                newp += piece_groups(ring, q, strideA, strideB, scA)
            issued = min(issued + 2, len(P))
            pending = newp
            k = -(-len(pending) // 4)
            grp, pending = pending[:k], pending[k:]
            m = m[2:]
            first_slot = 1
        items = []
        ri = gi = 0
        R_, G_ = len(reads), len(grp)
        nslots = len(m) + first_slot
        for sl in range(nslots):
            if not (first_slot and sl == 0):
                a(m[sl - first_slot])
            wr = (R_ * (sl + 1) + nslots - 1) // nslots
            while ri < wr:
                a(reads[ri]); ri += 1
            wg = (G_ * (sl + 1)) // nslots
            while gi < wg:
                emit_groups(a, [grp[gi]], vm); gi += 1
        while gi < G_:
            emit_groups(a, [grp[gi]], vm); gi += 1
    assert not pending
    a("s_nop 15")
    return vm

def cs_exchange(a, transposed, R):
    g = G
    a("v_and_b32 v14, 15, v1")
    a("v_lshrrev_b32 v15, 4, v1")
    a("v_lshlrev_b32 v15, 4, v15")
    a("v_lshl_add_u32 v15, v14, 6, v15")
    a(f"s_lshl_b32 s30, s{g.sWn}, 8")
    a(f"s_lshl_b32 s31, s{g.sWm}, 7")
    a("s_add_u32 s31, s31, s30")
    a("v_add_u32 v15, s31, v15")
    a("v_cmp_gt_u32 vcc, 2, v14")
    a("s_and_saveexec_b64 s[32:33], vcc")
    a(f"ds_write_b128 v15, v[{g.CS}:{g.CS+3}]")
    a("s_mov_b64 exec, s[32:33]")
    if transposed:
        a("v_lshrrev_b32 v14, 5, v1")
        a("v_lshlrev_b32 v14, 4, v14")
    else:
        a("v_and_b32 v14, 31, v1")
        a("v_lshlrev_b32 v14, 2, v14")
    a("v_add_u32 v14, s30, v14")
    a("s_waitcnt lgkmcnt(0)")
    a("s_barrier")
    for v in range(2):
        if transposed:
            for q in range(4):
                r = R + 4 + 16*v + 4*q
                a(f"ds_read_b128 v[{r}:{r+3}], v14 offset:{128*v + 32*q}")
        else:
            a(f"ds_read_b32 v{R+v}, v14 offset:{128*v}")

sIDX = 3
def prologue(a, defer=False):
    if PROF:
        a("s_memrealtime s[98:99]")
        a("s_waitcnt lgkmcnt(0)")
        a("s_mov_b32 s101, s98")
        for i in range(1, 14): a(f"s_mov_b32 s{80+i}, 0")
    load_ptrs(a)
    wave_ids(a)
    a(f"s_mov_b32 s{sRDY}, 0")
    if not defer: prologue_wait(a)

def prologue_wait(a):
    a("s_waitcnt lgkmcnt(0)")
    if os.environ.get("A1S0"): stamp(a, 7, True)
    cnt_srd(a)

def touch(a, srd_s, vaddr, soff, vd):
    a(f"buffer_load_dword v{vd}, v{vaddr}, s[{srd_s}:{srd_s+3}], {soff} offen")

def zero_counters(a):
    if MULTI: return
    L = a.label("zc")
    a("s_cmp_lg_u32 s2, 256")
    a(f"s_cbranch_scc1 {L}")
    a("v_lshlrev_b32 v14, 7, v0")
    a("v_mov_b32 v15, 0")
    a(f"buffer_store_dword v15, v14, s[{sCNT}:{sCNT+3}], 0 offen sc1")
    a("v_add_u32 v14, 0x8000, v14")
    a(f"buffer_store_dword v15, v14, s[{sCNT}:{sCNT+3}], 0 offen sc1")
    a("s_waitcnt vmcnt(0)")
    a("s_barrier")
    a("v_mov_b32 v14, 0")
    a("v_mov_b32 v15, 1")
    a("v_cmp_eq_u32 vcc, 0, v0")
    a("s_and_saveexec_b64 s[30:31], vcc")
    a(f"s_cbranch_execz {L}_x")
    a(f"global_store_dword v14, v15, s[{sDBG}:{sDBG+1}] sc1")
    a(f"{L}_x:")
    a("s_mov_b64 exec, s[30:31]")
    a(f"{L}:")

def warm_code(a, which="all"):
    g = G; b = sIDX
    a("v_lshlrev_b32 v13, 4, v1")
    a(f"s_cmp_eq_u32 s{g.sW}, 3")
    a(f"s_cselect_b32 s8, s{sWU}, s{sWG}")
    a(f"s_cselect_b32 s9, s{sWU+1}, s{sWG+1}")
    a("s_and_b32 s9, s9, 0xffff")
    a(f"s_mov_b32 s10, {D*F*2}")
    a("s_mov_b32 s11, 0x00020000")
    a(f"s_mul_i32 s30, s{b}, 8640")
    for i in range(9 if which == "all" else 0):
        a(f"buffer_load_dwordx4 v[{100+4*i}:{103+4*i}], v13, s[8:11], s30 offen")
        a("s_add_u32 s30, s30, 1024")
    a(f"s_cmp_eq_u32 s{g.sW}, 3")
    a(f"s_cselect_b32 s12, s{sWO}, s{sWD}")
    a(f"s_cselect_b32 s13, s{sWO+1}, s{sWD+1}")
    a(f"s_mov_b32 s14, {D*F*2}")
    a(f"s_cselect_b32 s14, {D*D*2}, s14")
    a("s_mov_b32 s30, 8640")
    a("s_cselect_b32 s30, 3200, s30")
    a("s_and_b32 s13, s13, 0xffff")
    a("s_mov_b32 s15, 0x00020000")
    a(f"s_mul_i32 s30, s30, s{b}")
    for i in range(9):
        a(f"buffer_load_dwordx4 v[{140+4*i}:{143+4*i}], v13, s[12:15], s30 offen")
        a("s_add_u32 s30, s30, 1024")


def phase_B0(a):
    g = G
    b = sIDX
    L = a.label("b0")
    a(f"s_cmp_ge_u32 s{g.sW}, 2")
    a(f"s_cbranch_scc1 {L}_w")
    srd(a, 4, sX, S*D*2)
    srd(a, 16, sWS, 0x10000)
    a("v_lshrrev_b32 v14, 4, v1")
    a(f"s_lshl_b32 s30, s{b}, 3")
    a(f"s_lshl_b32 s31, s{g.sW}, 2")
    a("s_add_u32 s30, s30, s31")
    a("v_add_u32 v14, s30, v14")
    a("v_mul_u32_u24 v15, 1280, v14")
    a("v_and_b32 v16, 15, v1")
    a("v_lshl_add_u32 v15, v16, 4, v15")
    for t in range(5):
        a(f"buffer_load_dwordx4 v[{100+4*t}:{103+4*t}], v15, s[4:7], 0 offen offset:{256*t}")
    a("s_waitcnt vmcnt(0)")
    a("s_barrier")
    if os.environ.get("A1S0"): stamp(a, 8, True)
    for i in range(20):
        a(f"v_lshlrev_b32 v{24+2*i}, 16, v{100+i}")
        a(f"v_and_b32 v{25+2*i}, 0xffff0000, v{100+i}")
    a("v_add_f32 v64, v24, v25")
    a("v_add_f32 v65, v26, v27")
    for i in range(4, 40, 2):
        a(f"v_add_f32 v64, v64, v{24+i}")
        a(f"v_add_f32 v65, v65, v{25+i}")
    a("v_add_f32 v64, v64, v65")
    def red(r):
        for sh in (8, 4, 2, 1):
            a("s_nop 1")
            a(f"v_add_f32_dpp v{r}, v{r}, v{r} row_ror:{sh} row_mask:0xf bank_mask:0xf")
    red(64)
    a(f"v_mul_f32 v64, {f32(1.0/640)}, v64")
    for i in range(40):
        a(f"v_sub_f32 v{24+i}, v{24+i}, v64")
    a("v_mul_f32 v65, v24, v24")
    a("v_mul_f32 v66, v25, v25")
    for i in range(2, 40, 2):
        a(f"v_fmac_f32 v65, v{24+i}, v{24+i}")
        a(f"v_fmac_f32 v66, v{25+i}, v{25+i}")
    a("v_add_f32 v65, v65, v66")
    red(65)
    a(f"v_mov_b32 v67, {f32(1e-5)}")
    a(f"v_fmac_f32 v67, {f32(1.0/640)}, v65")
    a("v_rsq_f32 v67, v67")
    a("s_nop 0")
    a("v_mul_f32 v66, v64, v67")
    a("v_lshlrev_b32 v14, 3, v14")
    a("v_cmp_eq_u32 vcc, 0, v16")
    a("v_mov_b32 v15, 0x7ffffff0")
    a("s_nop 0")
    a("v_cndmask_b32 v14, v15, v14, vcc")
    a(f"buffer_store_dwordx2 v[66:67], v14, s[16:19], 0 offen{SC}")
    if not MULTI:
        wait_ready(a)
        a(f"s_lshr_b32 s30, s{b}, 4")
        a("s_lshl_b32 s30, s30, 3")
        a(f"s_add_u32 s30, s30, {C_ST}")
        a("v_add_u32 v14, s30, v1")
        a("v_lshlrev_b32 v14, 7, v14")
        a("v_mov_b32 v15, 1")
        a("s_waitcnt vmcnt(0)")
        a("s_mov_b32 exec_lo, 0xff")
        a("s_mov_b32 exec_hi, 0")
        a(f"buffer_atomic_add v15, v14, s[{sCNT}:{sCNT+3}], 0 offen sc1")
        a("s_mov_b64 exec, -1")
    a(f"s_branch {L}_e")
    a(f"{L}_w:")
    a("s_barrier")
    if int(os.environ.get("WARM", "1")) == 1:
        warm_code(a)
    if int(os.environ.get("WARM", "1")) == 3:
        warm_code(a, "dw")
    a(f"{L}_e:")
    a("s_waitcnt vmcnt(0)")

vRDY, vPOLL, vPA = 232, 233, 234
def stats_loads(a, rowbase_s, transposed, R, vm=None):
    g = G
    if transposed:
        a("v_and_b32 v14, 31, v1")
        a(f"s_lshl_b32 s30, s{g.sWm}, 6")
        a(f"s_add_u32 s30, s30, s{rowbase_s}")
        a("v_add_u32 v14, s30, v14")
        a("v_lshlrev_b32 v14, 3, v14")
        a(f"buffer_load_dwordx2 v[{R}:{R+1}], v14, s[16:19], 0 offen{SC}")
        a(f"buffer_load_dwordx2 v[{R+2}:{R+3}], v14, s[16:19], 0 offen offset:256{SC}")
        n = 2
    else:
        a("v_lshrrev_b32 v15, 5, v1")
        a("v_lshlrev_b32 v15, 5, v15")
        a(f"s_lshl_b32 s30, s{g.sWm}, 6")
        a(f"s_add_u32 s30, s30, s{rowbase_s}")
        a("s_lshl_b32 s30, s30, 3")
        for u in range(2):
            for aa in range(4):
                r = R + 4 + 32*u + 8*aa
                a(f"buffer_load_dwordx4 v[{r}:{r+3}], v15, s[16:19], s30 offen offset:{256*u + 64*aa}{SC}")
                a(f"buffer_load_dwordx4 v[{r+4}:{r+7}], v15, s[16:19], s30 offen offset:{256*u + 64*aa + 16}{SC}")
        n = 16
    if vm is not None:
        for _ in range(n): vm.add('x')

def make_stats_hook(rb_s, rowbase_s, transposed, R, a1flag=False):
    def hook(a, n, vm):
        if MULTI:
            if n == 8: stats_loads(a, rowbase_s, transposed, R, vm)
            return
        if n == 3:
            a(f"v_mov_b32 v{vPA}, 0")
            a(f"global_load_dword v{vRDY}, v{vPA}, s[{sDBG}:{sDBG+1}] sc1")
            vm.add('x')
        if n == 6:
            a(f"v_readfirstlane_b32 s29, v{vRDY}")
            a(f"s_or_b32 s{sRDY}, s{sRDY}, s29")
            a("s_and_b32 s22, s2, 7")
            a(f"s_lshl_b32 s29, s{rb_s}, 3")
            a("s_add_u32 s22, s22, s29")
            a(f"s_add_u32 s22, s22, {C_ST}")
            a("s_lshl_b32 s29, s22, 7")
            a(f"v_mov_b32 v{vPA}, s29")
            a(f"buffer_load_dword v{vPOLL}, v{vPA}, s[{sCNT}:{sCNT+3}], 0 offen sc1")
            vm.add('x')
        if n == 8:
            stats_loads(a, rowbase_s, transposed, R, vm)
            if a1flag:
                a(f"s_add_u32 s29, s{sIDX}, {C_A1}")
                a(f"s_cmp_eq_u32 s{sRDY}, 0")
                a("s_cselect_b32 s29, 0x100000, s29")
                a("s_cselect_b32 s24, 1, 0")
                late_signal(29, 1)(a, vm)
    return hook

def stats_check(a, rb_s, rowbase_s, transposed, R, a1flag=False):
    if MULTI:
        a("s_waitcnt vmcnt(0)")
        return
    L = a.label("stc")
    a("s_waitcnt vmcnt(0)")
    a(f"v_readfirstlane_b32 s34, v{vPOLL}")
    a(f"s_cmp_eq_u32 s{sRDY}, 0")
    a(f"s_cbranch_scc1 {L}_slow")
    a("s_cmp_ge_u32 s34, 32")
    a(f"s_cbranch_scc1 {L}")
    a(f"{L}_slow:")
    a("s_mov_b32 s34, s24")
    wait_ready(a)
    if a1flag:
        a("s_cmp_eq_u32 s34, 0")
        a(f"s_cbranch_scc1 {L}_nf")
        a(f"s_add_u32 s29, s{sIDX}, {C_A1}")
        late_signal(29, 1)(a, None)
        a(f"{L}_nf:")
    wait_cnt(a, [22], 32, sleep=1)
    stats_loads(a, rowbase_s, transposed, R)
    a("s_waitcnt vmcnt(0)")
    a(f"{L}:")

def phase_A1(a, deferred=False):
    g = G
    Lend = a.label("a1_end"); Lv = a.label("a1_v")
    a(f"s_mov_b32 s79, 0x100000")
    a("v_mov_b32 v236, 0x7ffffff0")
    a(f"s_and_b32 s40, s{sIDX}, 7")
    a(f"s_lshr_b32 s41, s{sIDX}, 3")
    a("s_lshr_b32 s42, s40, 2")
    a("s_and_b32 s43, s40, 3")
    a("s_lshl_b32 s44, s42, 3")
    a("s_and_b32 s45, s41, 7")
    a("s_add_u32 s44, s44, s45")
    a("s_lshl_b32 s45, s43, 2")
    a("s_lshr_b32 s46, s41, 3")
    a("s_add_u32 s45, s45, s46")
    a(f"s_mul_i32 s{g.sA}, s44, {128*1280}")
    a(f"s_lshl_b32 s{g.sB0}, s45, 8")
    rot_value(a, 46, 41, 3, 1, 10, sh=3)
    rot_setup(a, 10, 128, 3840, 46)
    gemm_setup_dma(a, 1280, 3840)
    if deferred: prologue_wait(a)
    a("s_cmp_ge_u32 s45, 15")
    a(f"s_cbranch_scc0 {Lend}_go")
    if not MULTI:
        wait_ready(a)
        a(f"s_add_u32 s29, s{sIDX}, {C_A1}")
        late_signal(29, 1)(a, None)
    a(f"s_branch {Lend}")
    a(f"{Lend}_go:")
    srd(a, g.sA_srd, sX, S*D*2)
    srd(a, g.sB0_srd, sWQKV, D*3*D*2)
    srd(a, g.sB1_srd, sWQKV, D*3*D*2)
    ring = Ring(2, 10)
    NPRO = 2
    if os.environ.get("A1S0"): stamp(a, 4, True)
    vms = [gemm_prologue_dma(a, ring, 1280, 3840, npieces=NPRO)]
    if os.environ.get("A1S0"): stamp(a, 5, True)
    gemm_setup_reads(a, 2, swap=True)
    srd(a, 16, sWS, 0x10000)
    a("s_lshl_b32 s46, s44, 7")
    R = 132
    if os.environ.get("A1S0"): stamp(a, 6, True)
    import copy
    a("s_cmp_ge_u32 s45, 10")
    a(f"s_cbranch_scc1 {Lv}")
    gemm_main(a, 2, 10, True, 1280, 3840, vm=copy.deepcopy(vms[0]), npro=NPRO, stampbase=1, cs=True, hook=make_stats_hook(44, 46, True, R, a1flag=True))
    stamp(a, 2)
    cs_exchange(a, True, R)
    if os.environ.get("EPI"): stamp(a, 12)
    stats_check(a, 44, 46, True, R, a1flag=True)
    if os.environ.get("EPI"): stamp(a, 13)
    a("s_cmp_ge_u32 s45, 5")
    a("s_cselect_b32 s42, 1, 0")
    a("s_mul_i32 s43, s42, 5")
    a("s_sub_u32 s43, s45, s43")
    a(f"s_mov_b32 s30, {Q4_OFF}")
    a(f"s_mov_b32 s31, {K4_OFF}")
    a("s_cmp_eq_u32 s42, 1")
    a("s_cselect_b32 s30, s31, s30")
    a(f"s_add_u32 s8, s{sWS}, s30")
    a(f"s_addc_u32 s9, s{sWS+1}, 0")
    a("s_and_b32 s9, s9, 0xffff")
    a(f"s_mov_b32 s10, {80*GS8}")
    a("s_mov_b32 s11, 0x00020000")
    a("s_cmp_eq_u32 s42, 1")
    a(f"s_mov_b32 s53, {f32(QSCALE)}")
    a("s_cselect_b32 s53, 1.0, s53")
    a("s_lshl_b32 s30, s43, 4")
    a(f"s_lshl_b32 s31, s{g.sWn}, 2")
    a("s_add_u32 s30, s30, s31")
    a("s_lshl_b32 s30, s30, 15")
    a(f"s_lshl_b32 s31, s{g.sWm}, 6")
    a("s_add_u32 s31, s31, s46")
    a("s_lshl_b32 s31, s31, 4")
    a("s_add_u32 s51, s30, s31")
    a(f"s_lshl_b32 s30, s{g.sWm}, 18")
    a("s_add_u32 s52, s51, s30")
    a(f"s_xor_b32 s30, s30, {8*GS8}")
    a("s_add_u32 s51, s51, s30")
    a("v_lshrrev_b32 v14, 5, v1")
    a("v_lshlrev_b32 v14, 15, v14")
    a("v_and_b32 v15, 31, v1")
    a("v_lshl_add_u32 v14, v15, 4, v14")
    for u in range(2):
        a(f"v_mul_f32 v{R+2*u}, s53, v{R+2*u}")
        a(f"v_mul_f32 v{R+2*u+1}, s53, v{R+2*u+1}")
    a("s_waitcnt lgkmcnt(0)")
    a(f"s_cmp_eq_u32 s{g.sWm}, 0")
    a(f"s_cbranch_scc1 {Lend}_ns")
    for r in range(16):
        a(f"v_swap_b32 v{R+4+r}, v{R+20+r}")
    a(f"{Lend}_ns:")
    k = 0
    for v in range(2):
        for p in range(2):
            for u in range(2):
                t0 = 232 + 12*(k & 1); k += 1
                for h_ in range(2):
                    aa = 2*p + h_
                    acc = g.ACC + 16*(2*u + v) + 4*aa
                    cs = R + 4 + 16*v + 4*aa
                    for b in range(4):
                        a(f"v_mul_f32 v{t0+4*h_+b}, v{R+2*u}, v{cs+b}")
                    for b in range(4):
                        a(f"v_fma_f32 v{t0+4*h_+b}, v{acc+b}, v{R+2*u+1}, -v{t0+4*h_+b}")
                for j in range(4):
                    a(f"v_cvt_pk_bf16_f32 v{t0+8+j}, v{t0+2*j}, v{t0+2*j+1}")
                a(f"s_add_u32 s30, s{52 if v == 0 else 51}, {2*p*GS8 + 512*u}")
                a("s_nop 0")
                a(f"v_permlane32_swap_b32 v{t0+8}, v{t0+10}")
                a(f"v_permlane32_swap_b32 v{t0+9}, v{t0+11}")
                a(f"buffer_store_dwordx4 v[{t0+8}:{t0+11}], v14, s[8:11], s30 offen{SC}")
    a(f"s_branch {Lend}_s")
    a(f"{Lv}:")
    gemm_main(a, 2, 10, False, 1280, 3840, vm=copy.deepcopy(vms[0]), npro=NPRO, stampbase=1, cs=True, hook=make_stats_hook(44, 46, False, R, a1flag=True))
    stamp(a, 2)
    cs_exchange(a, False, R)
    stats_check(a, 44, 46, False, R, a1flag=True)
    a("s_sub_u32 s43, s45, 10")
    srd(a, 8, sWS, VHS*32, V_OFF)
    a("s_lshl_b32 s30, s44, 2")
    a(f"s_lshl_b32 s31, s{g.sWm}, 1")
    a("s_add_u32 s30, s30, s31")
    a("s_mul_i32 s52, s30, 1280")
    a("s_lshl_b32 s31, s43, 7")
    a(f"s_lshl_b32 s32, s{g.sWn}, 5")
    a("s_add_u32 s31, s31, s32")
    a("v_and_b32 v14, 31, v1")
    a("v_add_u32 v14, s31, v14")
    a("v_lshrrev_b32 v15, 5, v1")
    a("v_mul_u32_u24 v15, 320, v15")
    a(f"s_mov_b32 s51, {VHS}")
    a(f"s_lshl_b32 s54, s{g.sWm}, 6")
    a("s_xor_b32 s55, s54, 64")
    a("s_waitcnt lgkmcnt(0)")
    a(f"s_cmp_eq_u32 s{g.sWm}, 0")
    a(f"s_cbranch_scc1 {Lend}_nv")
    a(f"v_swap_b32 v{R}, v{R+1}")
    a(f"{Lend}_nv:")
    k = 0
    for v in range(2):
        a(f"v_add_u32 v16, s{54+v}, v14")
        a("v_mul_u32_u24 v17, 3277, v16")
        a("v_lshrrev_b32 v17, 16, v17")
        a("v_mul_u32_u24 v18, 20, v17")
        a("v_sub_u32 v18, v16, v18")
        a("v_mul_lo_u32 v19, v17, s51")
        a("v_add_u32 v19, v19, v15")
        a("v_lshl_add_u32 v19, v18, 4, v19")
        for u in range(2):
            acc = g.ACC + 16*(2*u + v)
            for half in range(2):
                t0 = 232 + 12*(k & 1); k += 1
                for j8 in range(8):
                    rI = 8*half + j8
                    st = R + 4 + 32*u + 8*(rI >> 2) + 2*(rI & 3)
                    a(f"v_mul_f32 v{t0+j8}, v{st}, v{R+v}")
                    a(f"v_fma_f32 v{t0+j8}, v{acc+rI}, v{st+1}, -v{t0+j8}")
                for j in range(4):
                    a(f"v_cvt_pk_bf16_f32 v{t0+8+j}, v{t0+2*j}, v{t0+1+2*j}")
                a(f"s_add_u32 s30, s52, {1280*u + 640*half}")
                a(f"buffer_store_dwordx4 v[{t0+8}:{t0+11}], v19, s[8:11], s30 offen{SC}")
    a(f"{Lend}_s:")
    a("s_lshl_b32 s79, s43, 3")
    a(f"s_add_u32 s79, s79, {C_KV}")
    stamp(a, 3)
    if MULTI: a("s_waitcnt vmcnt(0)")
    a(f"{Lend}:")

def late_signal(base_s, nl):
    def cb(a, vm):
        if MULTI: return
        L = a.label("ls")
        a(f"s_cmp_lg_u32 s{G.sW}, 0")
        a(f"s_cbranch_scc1 {L}")
        a(f"v_add_u32 v{vPA}, s{base_s}, v1")
        a(f"v_lshlrev_b32 v{vPA}, 7, v{vPA}")
        a(f"s_mov_b32 exec_lo, {(1<<nl)-1}")
        a("s_mov_b32 exec_hi, 0")
        a(f"v_mov_b32 v{vPA+1}, 1")
        a(f"buffer_atomic_add v{vPA+1}, v{vPA}, s[{sCNT}:{sCNT+3}], 0 offen sc1")
        a("s_mov_b64 exec, -1")
        a(f"s_branch {L}_e")
        a(f"{L}:")
        a(f"v_mov_b32 v{vPA}, 0x7ffffff0")
        a(f"buffer_store_dword v{vPA}, v{vPA}, s[{sCNT}:{sCNT+3}], 0 offen")
        a(f"{L}_e:")
        if vm is not None: vm.add('x')
    return cb

def phase_GU(a, rnd, st0, mainprio, epiprio, first_cb=None, kvpoll=False, mid=None):
    g = G
    b = sIDX
    L = a.label("gu")
    a(f"s_and_b32 s40, s{b}, 7")
    a(f"s_lshr_b32 s41, s{b}, 3")
    if rnd: a("s_add_u32 s41, s41, 32")
    a("s_lshr_b32 s42, s40, 2")
    a("s_and_b32 s43, s40, 3")
    a("s_lshr_b32 s45, s41, 3")
    a("s_cmp_eq_u32 s43, 3")
    a("s_cselect_b32 s46, 6, 7")
    a("s_mov_b32 s77, 0x100000") if False else None
    a("s_cmp_ge_u32 s45, s46")
    a(f"s_cbranch_scc1 {L}_done")
    srd(a, g.sA_srd, sX, S*D*2)
    srd(a, g.sB0_srd, sWG, D*F*2)
    srd(a, g.sB1_srd, sWU, D*F*2)
    srd(a, 16, sWS, 0x10000)
    a("s_mul_i32 s46, s43, 7")
    a("s_add_u32 s45, s45, s46")
    a("s_lshl_b32 s44, s42, 3")
    a("s_and_b32 s46, s41, 7")
    a("s_add_u32 s44, s44, s46")
    a(f"s_mul_i32 s{g.sA}, s44, {128*1280}")
    a(f"s_lshl_b32 s{g.sB0}, s45, 7")
    rot_value(a, 46, 41, 3, 1, 10, sh=3)
    rot_setup(a, 10, 128, 3456, 46)
    gemm_setup_dma(a, 1280, 3456)
    ring = Ring(2, 10, dB1=0)
    vm = gemm_prologue_dma(a, ring, 1280, 3456, npieces=2)
    if mid:
        mid(a)
        vm.ops = []
        srd(a, g.sA_srd, sX, S*D*2)
        srd(a, g.sB0_srd, sWG, D*F*2)
        srd(a, g.sB1_srd, sWU, D*F*2)
        srd(a, 16, sWS, 0x10000)
    gemm_setup_reads(a, 2, swap=True)
    a("s_lshl_b32 s46, s44, 7")
    R = 132
    stamp(a, st0)
    a(f"s_setprio {mainprio}")
    hook0 = make_stats_hook(44, 46, True, R)
    def hook(a, n, vm):
        hook0(a, n, vm)
    gemm_main(a, 2, 10, True, 1280, 3456, vm=vm, npro=2, dB1=0, cs=True, hook=hook, after_first_barrier=first_cb)
    a(f"s_setprio {epiprio}")
    stamp(a, st0 + 1)
    cs_exchange(a, True, R)
    stats_check(a, 44, 46, True, R)
    srd(a, 8, sWS, 216*GS8, H4_OFF)
    a("s_lshl_b32 s30, s45, 3")
    a(f"s_lshl_b32 s31, s{g.sWn}, 2")
    a("s_add_u32 s30, s30, s31")
    a("s_lshl_b32 s30, s30, 15")
    a(f"s_lshl_b32 s31, s{g.sWm}, 6")
    a("s_add_u32 s31, s31, s46")
    a("s_lshl_b32 s31, s31, 4")
    a("s_add_u32 s51, s30, s31")
    a("v_lshrrev_b32 v14, 5, v1")
    a("v_lshlrev_b32 v14, 15, v14")
    a("v_and_b32 v15, 31, v1")
    a("v_lshl_add_u32 v14, v15, 4, v14")
    a("s_waitcnt lgkmcnt(0)")
    stamp(a, st0 + 2)
    def h_epi(gslot):
        k = 0
        for u in range(2):
            a(f"v_mul_f32 v16, {f32(-LOG2E)}, v{R+2*u}")
            a(f"v_mul_f32 v17, {f32(-LOG2E)}, v{R+2*u+1}")
            for p in range(2):
                pk = 248 + 4*(k & 1); k += 1
                for h_ in range(2):
                    aa = 2*p + h_
                    ga = g.ACC + 16*(2*u + gslot) + 4*aa
                    ua = g.ACC + 16*(2*u + 1 - gslot) + 4*aa
                    cg_ = R + 4 + 4*aa
                    cu_ = R + 4 + 16 + 4*aa
                    t0 = 208 + 8*h_
                    for b_ in range(4):
                        a(f"v_mul_f32 v{t0+b_}, v16, v{cg_+b_}")
                        a(f"v_mul_f32 v{t0+4+b_}, v{R+2*u}, v{cu_+b_}")
                    for b_ in range(4):
                        a(f"v_fma_f32 v{t0+b_}, v{ga+b_}, v17, -v{t0+b_}")
                        a(f"v_fma_f32 v{t0+4+b_}, v{ua+b_}, v{R+2*u+1}, -v{t0+4+b_}")
                    for b_ in range(4):
                        a(f"v_exp_f32 v{t0+b_}, v{t0+b_}")
                    for b_ in range(4):
                        a(f"v_add_f32 v{t0+b_}, 1.0, v{t0+b_}")
                    for b_ in range(4):
                        a(f"v_rcp_f32 v{t0+b_}, v{t0+b_}")
                    a("s_nop 0")
                    for b_ in range(4):
                        a(f"v_mul_f32 v{t0+b_}, v{t0+b_}, v{t0+4+b_}")
                    a(f"v_cvt_pk_bf16_f32 v{pk+2*h_}, v{t0}, v{t0+1}")
                    a(f"v_cvt_pk_bf16_f32 v{pk+2*h_+1}, v{t0+2}, v{t0+3}")
                a(f"s_add_u32 s30, s51, {2*p*GS8 + 512*u}")
                a("s_nop 0")
                a(f"v_permlane32_swap_b32 v{pk}, v{pk+2}")
                a(f"v_permlane32_swap_b32 v{pk+1}, v{pk+3}")
                a(f"buffer_store_dwordx4 v[{pk}:{pk+3}], v14, s[8:11], s30 offen{SC}")
    a(f"s_cmp_eq_u32 s{g.sWm}, 0")
    a(f"s_cbranch_scc0 {L}_w1")
    h_epi(0)
    a(f"s_branch {L}_we")
    a(f"{L}_w1:")
    h_epi(1)
    a(f"{L}_we:")
    a(f"s_add_u32 s77, s44, {C_H}") if False else None
    a(f"s_add_u32 s35, s44, {C_H}")
    stamp(a, st0 + 3)
    if mid:
        a(f"s_branch {L}_fin")
        a(f"{L}_done:")
        mid(a)
        a(f"{L}_fin:")
    else:
        a(f"{L}_done:")

def phase_A2(a):
    g = G
    sWv = g.sW
    a(f"s_and_b32 s27, s{sWv}, 1")
    a(f"s_lshr_b32 s28, s{sWv}, 1")
    a(f"s_and_b32 s40, s{sIDX}, 7")
    a(f"s_lshr_b32 s41, s{sIDX}, 3")
    a("s_and_b32 s42, s41, 3")
    a("s_lshl_b32 s40, s40, 2")
    a("s_add_u32 s40, s40, s42")
    a("s_lshr_b32 s41, s41, 2")
    srd(a, 4, sWS, 80*GS8, Q4_OFF)
    srd(a, 8, sWS, 80*GS8, K4_OFF)
    srd(a, 12, sWS, 160*GS, O4_OFF)
    srd(a, 16, sWS, WS_USED)
    Q1, Q2 = 2, 18
    O = 34
    S0, S1 = 98, 114
    P = 130
    NS = 4
    KA = [138, 146, 154, 162]
    VA = [196, 204, 212, 220]
    vKa, vKb, vKc, vV, vVi = 170, 171, 172, 173, 174
    T = 176
    a(f"v_cmp_eq_u32 vcc, 0, v1")
    a(f"v_cmp_eq_u32 s[30:31], 40, v1")
    a("s_or_b64 vcc, vcc, s[30:31]")
    a(f"v_mov_b32 v{T+4}, 0x3f803f80")
    a("s_nop 0")
    a(f"v_cndmask_b32 v{T}, 0, v{T+4}, vcc")
    for r in range(1, 4):
        a(f"v_mov_b32 v{T+r}, v{T}")
    a(f"v_lshlrev_b32 v{T+4}, 4, v1")
    a("s_lshl_b32 s30, s2, 10")
    a(f"s_add_u32 s53, s30, {ONES_OFF}")
    a(f"buffer_store_dwordx4 v[{T}:{T+3}], v{T+4}, s[16:19], s53 offen{SC}")
    a(f"v_and_b32 v{T+5}, 31, v1")
    a(f"v_lshrrev_b32 v{T+6}, 5, v1")
    a(f"v_lshlrev_b32 v{T+7}, 15, v{T+6}")
    a(f"v_lshl_add_u32 v{vKa}, v{T+5}, 4, v{T+7}")
    a(f"v_lshlrev_b32 v{vKc}, 4, v{T+5}")
    a("s_mul_i32 s30, s40, 5")
    a("s_lshr_b32 s30, s30, 1")
    a("s_and_b32 s31, s40, 1")
    a("s_add_u32 s34, s30, s31")
    a("s_xor_b32 s31, s31, 1")
    a("s_lshl_b32 s31, s31, 1")
    a("s_add_u32 s29, s30, s31")
    a("s_lshl_b32 s34, s34, 15")
    a("s_lshl_b32 s29, s29, 15")
    a(f"s_mul_i32 s30, s40, {VHS}")
    a(f"s_mul_i32 s31, s28, {32*1280}")
    a("s_add_u32 s30, s30, s31")
    a(f"s_add_u32 s54, s30, {V_OFF}")
    a(f"v_mul_u32_u24 v{T+7}, 320, v{T+6}")
    a(f"v_lshl_add_u32 v{T+7}, v{T+5}, 4, v{T+7}")
    a(f"v_add_u32 v{T+7}, s54, v{T+7}")
    a(f"v_cmp_lt_u32 vcc, 20, v{T+5}")
    a(f"v_mov_b32 v{T+8}, s53")
    a(f"v_add_u32 v{T+9}, 16, v{T+8}")
    a(f"v_cndmask_b32 v{T+8}, v{T+8}, v{T+9}, vcc")
    a(f"v_cmp_gt_u32 vcc, 20, v{T+5}")
    a(f"v_mov_b32 v{T+9}, 1280")
    a(f"v_mov_b32 v{T+10}, 0")
    a(f"v_cndmask_b32 v{T+11}, v{T+8}, v{T+7}, vcc")
    a(f"v_cndmask_b32 v{vVi}, v{T+10}, v{T+9}, vcc")
    for st in range(NS):
        a(f"v_mov_b32 v{KA[st]+4}, 0x3f803f80")
        a(f"v_mov_b32 v{KA[st]+5}, 0x00003f80")
        a(f"v_mov_b32 v{KA[st]+6}, 0")
        a(f"v_mov_b32 v{KA[st]+7}, 0")
    a("s_mov_b32 s24, s29")
    for j in range(4):
        for r in range(4):
            a(f"v_mov_b32 v{Q2+4*j+r}, 0")
    if not MULTI:
        a("s_waitcnt vmcnt(0)")
        if not A_GU: stamp(a, 8)
        a("s_barrier")
        if not A_GU: stamp(a, 9)
        late_signal(35 if A_GU else 79, 1 if A_GU else 8)(a, None)
        wait_ready(a)
        a("s_mul_i32 s50, s40, 20")
        a("s_add_u32 s51, s50, 19")
        a("s_lshr_b32 s50, s50, 7")
        a("s_lshr_b32 s51, s51, 7")
        a("s_and_b32 s32, s2, 7")
        a("s_lshl_b32 s50, s50, 3")
        a("s_lshl_b32 s51, s51, 3")
        a("s_add_u32 s50, s50, s32")
        a("s_add_u32 s51, s51, s32")
        wait_cnt(a, [50, 51], 48, sleep=2, wave0=True)
        a("s_barrier")
    else:
        a("s_waitcnt vmcnt(0)")
    stamp(a, 4)
    a("s_lshl_b32 s43, s41, 3")
    a("s_lshl_b32 s44, s27, 2")
    a("s_add_u32 s43, s43, s44")
    a("s_lshl_b32 s44, s43, 9")
    for j in range(4):
        a(f"s_add_u32 s30, s44, {512*j}")
        a("s_add_u32 s30, s30, s34")
        a(f"buffer_load_dwordx4 v[{Q1+4*j}:{Q1+4*j+3}], v{vKa}, s[4:7], s30 offen{SC}")
    a("s_mov_b32 exec_hi, 0")
    for j in range(4):
        a(f"s_add_u32 s30, s44, {512*j}")
        a("s_add_u32 s30, s30, s24")
        a(f"buffer_load_dwordx4 v[{Q2+4*j}:{Q2+4*j+3}], v{vKc}, s[4:7], s30 offen{SC}")
    a("s_mov_b64 exec, -1")
    a("s_lshl_b32 s54, s28, 14")
    a("s_add_u32 s53, s54, s24")
    a("s_add_u32 s54, s54, s34")
    a("s_mov_b32 s55, 0")
    a("s_waitcnt vmcnt(0)")
    a("s_mov_b32 exec_hi, 0")
    a("s_bitcmp1_b32 s40, 0")
    a("s_cbranch_scc1 L_at_qodd")
    for j in range(4):
        a(f"v_mov_b32 v{Q2+4*j+2}, 0")
        a(f"v_mov_b32 v{Q2+4*j+3}, 0")
    a("s_branch L_at_qdone")
    a("L_at_qodd:")
    for j in range(4):
        a(f"v_mov_b32 v{Q2+4*j}, 0")
        a(f"v_mov_b32 v{Q2+4*j+1}, 0")
    a("L_at_qdone:")
    a("s_mov_b64 exec, -1")
    def ldK(st):
        a(f"buffer_load_dwordx4 v[{KA[st]}:{KA[st]+3}], v{vKa}, s[8:11], s48 offen{SC}")
        a("s_mov_b32 exec_hi, 0")
        a(f"buffer_load_dwordx4 v[{KA[st]+4}:{KA[st]+7}], v{vKc}, s[8:11], s49 offen{SC}")
        a("s_mov_b32 exec_hi, -1")
        a("s_add_u32 s48, s48, 512")
        a("s_add_u32 s49, s49, 512")
    def ldV(st):
        a(f"buffer_load_dwordx4 v[{VA[st]}:{VA[st]+3}], v{vV}, s[16:19], 0 offen{SC}")
        a(f"buffer_load_dwordx4 v[{VA[st]+4}:{VA[st]+7}], v{vV}, s[16:19], 0 offen offset:640{SC}")
        a(f"v_add_u32 v{vV}, v{vV}, v{vVi}")
    SB = [S0, S1]
    def mf(d, x, y, c):
        a(f"v_mfma_f32_32x32x16_bf16 v[{d}:{d+15}], v[{x}:{x+3}], v[{y}:{y+3}], {c}")
    def qk1(Sn, kst, j): mf(Sn, KA[kst], Q1+4*j, "0")
    def qk2(Sn, kst, j): mf(Sn, KA[kst]+4, Q2+4*j, f"v[{Sn}:{Sn+15}]")
    PB = [P, 188]
    def pv(j, vst, half, Pr): mf(O+16*j, VA[vst]+4*half, Pr+4*half, f"v[{O+16*j}:{O+16*j+15}]")
    a("L_att_pass:")
    a("s_mov_b32 s48, s54")
    a("s_mov_b32 s49, s53")
    a(f"v_mov_b32 v{vV}, v{T+11}")
    ldK(0); ldV(0); ldK(1); ldV(1); ldK(2); ldV(2); ldK(3)
    for r in range(64):
        a(f"v_mov_b32 v{O+r}, 0")
    for r in range(8):
        a(f"v_mov_b32 v{PB[1]+r}, 0")
    for r in range(8):
        a(f"v_mov_b32 v{VA[3]+r}, 0")
    a("s_waitcnt vmcnt(12)")
    qk1(S0, 0, 0); qk2(S0, 0, 0)
    a("s_nop 15")
    stamp(a, 5)
    def step(kst, j):
        Sc = SB[j & 1]; Sn = SB[(j + 1) & 1]
        Pc = PB[j & 1]; Pp = PB[(j + 1) & 1]
        e = lambda i: a(f"v_exp_f32 v{Sc+i}, v{Sc+i}")
        c = lambda i: a(f"v_cvt_pk_bf16_f32 v{Pc+i}, v{Sc+2*i}, v{Sc+2*i+1}")
        pj = (j - 1) & 3
        pvst = kst if j > 0 else (kst - 1) % NS
        nk = kst if j < 3 else (kst + 1) % NS
        nj = (j + 1) & 3
        if j == 3:
            a("s_waitcnt vmcnt(10)")
        qk1(Sn, nk, nj)
        e(0); e(1); e(2)
        qk2(Sn, nk, nj)
        if j == 3:
            ldK(kst)
        e(3); e(4); e(5)
        if j == 1:
            a("s_waitcnt vmcnt(12)")
        pv(pj, pvst, 0, Pp)
        e(6); e(7); c(0); c(1)
        pv(pj, pvst, 1, Pp)
        if j == 0:
            ldV((kst - 1) % NS)
        e(8); e(9); c(2); c(3)
        e(10); e(11); e(12); e(13); c(4); c(5)
        e(14); e(15); c(6); c(7)
    a("s_mov_b32 s50, 8")
    a(".p2align 6")
    a("L_at_loop:")
    for kst in range(NS):
        for j in range(4):
            step(kst, j)
    a("s_sub_u32 s50, s50, 1")
    a("s_cmp_lg_u32 s50, 0")
    a("s_cbranch_scc1 L_at_loop")
    a("s_nop 1")
    pv(3, NS - 1, 0, PB[1])
    pv(3, NS - 1, 1, PB[1])
    stamp(a, 6)
    a(f"v_lshlrev_b32 v{T}, 2, v1")
    a(f"s_mul_i32 s51, s{sWv}, 6144")
    a(f"v_add_u32 v{T+1}, s51, v{T}")
    a(f"s_xor_b32 s52, s{sWv}, 2")
    a("s_mul_i32 s52, s52, 6144")
    a(f"v_add_u32 v{T+2}, s52, v{T}")
    a("s_nop 10")
    a("s_cmp_eq_u32 s28, 0")
    a("s_cbranch_scc0 L_at_kh1")
    for t2 in range(2):
        for r in range(12):
            a(f"ds_write_b32 v{T+1}, v{O+16*(2+t2)+r} offset:{(t2*12+r)*256}")
    a("s_waitcnt lgkmcnt(0)")
    a("s_barrier")
    for t2 in range(2):
        for r in range(12):
            a(f"ds_read_b32 v{S0+t2*12+r}, v{T+2} offset:{(t2*12+r)*256}")
    a("s_waitcnt lgkmcnt(0)")
    for t2 in range(2):
        for r in range(12):
            a(f"v_add_f32 v{O+16*t2+r}, v{O+16*t2+r}, v{S0+t2*12+r}")
    a("s_branch L_at_fin")
    a("L_at_kh1:")
    for t2 in range(2):
        for r in range(12):
            a(f"ds_write_b32 v{T+1}, v{O+16*t2+r} offset:{(t2*12+r)*256}")
    a("s_waitcnt lgkmcnt(0)")
    a("s_barrier")
    for t2 in range(2):
        for r in range(12):
            a(f"ds_read_b32 v{S0+t2*12+r}, v{T+2} offset:{(t2*12+r)*256}")
    a("s_waitcnt lgkmcnt(0)")
    for t2 in range(2):
        for r in range(12):
            a(f"v_add_f32 v{O+16*t2+r}, v{O+16*(2+t2)+r}, v{S0+t2*12+r}")
    a("L_at_fin:")
    for t2 in range(2):
        o = O + 16*t2
        a(f"v_mov_b32 v{T+4+2*t2}, v{o+8}")
        a(f"v_mov_b32 v{T+5+2*t2}, v{o+8}")
    a("s_nop 1")
    for t2 in range(2):
        a(f"v_permlane32_swap_b32 v{T+4+2*t2}, v{T+5+2*t2}")
    a("s_nop 1")
    a("s_cmp_lg_u32 s55, 0")
    a("s_cbranch_scc1 L_at_store")
    a("s_mov_b64 s[44:45], 0")
    a("s_mov_b32 s46, 0x207")
    for t2 in range(2):
        o = O + 16*t2
        for r in range(12):
            a(f"v_cmp_class_f32 vcc, v{o+r}, s46")
            if r >= 8:
                a("s_mov_b32 vcc_hi, 0")
            a("s_or_b64 s[44:45], s[44:45], vcc")
        a(f"v_cmp_nle_f32 vcc, {f32(2.0**-40)}, v{T+5+2*t2}")
        a("s_or_b64 s[44:45], s[44:45], vcc")
        a(f"v_cmp_nge_f32 vcc, {f32(2.0**60)}, v{T+5+2*t2}")
        a("s_or_b64 s[44:45], s[44:45], vcc")
    a("s_cmp_lg_u64 s[44:45], 0")
    a("s_cselect_b32 s44, 1, 0")
    a(f"v_mov_b32 v{T+8}, s44")
    a(f"s_lshl_b32 s45, s{sWv}, 2")
    a(f"s_add_u32 s45, s45, 24576")
    a(f"v_mov_b32 v{T+9}, s45")
    a(f"ds_write_b32 v{T+9}, v{T+8}")
    a("s_waitcnt lgkmcnt(0)")
    a("s_barrier")
    a(f"v_mov_b32 v{T+9}, 24576")
    a(f"ds_read_b128 v[{T+12}:{T+15}], v{T+9}")
    a("s_waitcnt lgkmcnt(0)")
    a(f"v_or_b32 v{T+12}, v{T+12}, v{T+13}")
    a(f"v_or_b32 v{T+14}, v{T+14}, v{T+15}")
    a(f"v_or_b32 v{T+12}, v{T+12}, v{T+14}")
    a("s_nop 0")
    a(f"v_readfirstlane_b32 s44, v{T+12}")
    a("s_cmp_eq_u32 s44, 0")
    a("s_cbranch_scc1 L_at_store")
    M = O
    a("s_waitcnt vmcnt(0)")
    for j in range(4):
        a(f"v_mov_b32 v{M+j}, 0xff800000")
    a("s_mov_b32 s48, s54")
    a("s_mov_b32 s49, s53")
    a("s_mov_b32 s50, 32")
    a("L_at_maxloop:")
    ldK(0)
    a("s_waitcnt vmcnt(0)")
    for j in range(4):
        qk1(S0, 0, j); qk2(S0, 0, j)
        a("s_nop 15")
        a("s_nop 3")
        for r in range(16):
            a(f"v_max_f32 v{M+j}, v{M+j}, v{S0+r}")
        a("s_nop 3")
    a("s_sub_u32 s50, s50, 1")
    a("s_cmp_lg_u32 s50, 0")
    a("s_cbranch_scc1 L_at_maxloop")
    for j in range(4):
        a(f"v_mov_b32 v{T+4}, v{M+j}")
        a(f"v_mov_b32 v{T+5}, v{M+j}")
        a("s_nop 1")
        a(f"v_permlane32_swap_b32 v{T+4}, v{T+5}")
        a("s_nop 1")
        a(f"v_max_f32 v{M+j}, v{T+4}, v{T+5}")
    a("s_barrier")
    for j in range(4):
        a(f"ds_write_b32 v{T+1}, v{M+j} offset:{j*256}")
    a("s_waitcnt lgkmcnt(0)")
    a("s_barrier")
    for j in range(4):
        a(f"ds_read_b32 v{S1+j}, v{T+2} offset:{j*256}")
    a("s_waitcnt lgkmcnt(0)")
    for j in range(4):
        a(f"v_max_f32 v{M+j}, v{M+j}, v{S1+j}")
        a(f"v_sub_f32 v{T+4}, 0, v{M+j}")
        a(f"v_cvt_pk_bf16_f32 v{T+5}, v{T+4}, v{T+4}")
        a(f"v_lshlrev_b32 v{T+6}, 16, v{T+5}")
        a(f"v_sub_f32 v{T+4}, v{T+4}, v{T+6}")
        a(f"v_cvt_pk_bf16_f32 v{T+7}, v{T+4}, v{T+4}")
        a(f"v_lshlrev_b32 v{T+8}, 16, v{T+7}")
        a(f"v_sub_f32 v{T+4}, v{T+4}, v{T+8}")
        a(f"v_cvt_pk_bf16_f32 v{T+9}, v{T+4}, v{T+4}")
        a(f"v_and_b32 v{T+5}, 0xffff, v{T+5}")
        a(f"v_or_b32 v{T+5}, v{T+5}, v{T+8}")
        a(f"v_and_b32 v{T+9}, 0xffff, v{T+9}")
        a("s_mov_b32 exec_lo, 0")
        a(f"v_mov_b32 v{Q2+4*j}, v{T+5}")
        a(f"v_mov_b32 v{Q2+4*j+1}, v{T+9}")
        a("s_mov_b32 exec_lo, -1")
    a("s_barrier")
    a("s_mov_b32 s55, 1")
    a("s_branch L_att_pass")
    a("L_at_store:")
    a("s_lshl_b32 s51, s28, 1")
    a("s_add_u32 s51, s51, s43")
    a("s_lshl_b32 s51, s51, 8")
    a("s_add_u32 s51, s51, s45") if False else None
    a(f"s_mul_i32 s52, s40, {5*GS}")
    a("s_add_u32 s51, s51, s52")
    a(f"v_and_b32 v{T}, 31, v1")
    a(f"v_lshrrev_b32 v{T+1}, 5, v1")
    a(f"v_lshlrev_b32 v{T+2}, 14, v{T+1}")
    a(f"v_lshl_add_u32 v{T}, v{T}, 3, v{T+2}")
    a(f"v_cmp_eq_u32 vcc, 0, v{T+1}")
    a(f"v_mov_b32 v{T+8}, 0x7ffffff0")
    a("s_nop 0")
    a(f"v_cndmask_b32 v{T+3}, v{T+8}, v{T}, vcc")
    for t2 in range(2):
        o = O + 16*t2
        a(f"v_rcp_f32 v{T+9}, v{T+5+2*t2}")
        a("s_nop 0")
        for r in range(12):
            a(f"v_mul_f32 v{o+r}, v{o+r}, v{T+9}")
        pk = S1 + 6*t2
        for gI in range(3):
            a(f"v_cvt_pk_bf16_f32 v{pk+2*gI}, v{o+4*gI}, v{o+4*gI+1}")
            a(f"v_cvt_pk_bf16_f32 v{pk+2*gI+1}, v{o+4*gI+2}, v{o+4*gI+3}")
        for gI in range(3):
            a(f"s_add_u32 s30, s51, {2*gI*GS + 256*t2}")
            va = T if gI < 2 else T+3
            a(f"buffer_store_dwordx2 v[{pk+2*gI}:{pk+2*gI+1}], v{va}, s[12:15], s30 offen{SC}")
    if not MULTI:
        if not A_GU: stamp(a, 10)
        a(f"s_add_u32 s30, s41, {C_O}")
        a("s_lshl_b32 s30, s30, 7")
        a(f"v_mov_b32 v{T}, s30")
        if PROF and not A_GU:
            a("s_waitcnt vmcnt(0)")
            stamp(a, 11)
        signal(a, sWv, T, T+1, 30, 1)
    a("s_waitcnt vmcnt(0)")
    stamp(a, 7)

def phase_B23(a):
    g = G
    b = sIDX
    a(f"s_and_b32 s40, s{b}, 7")
    a(f"s_lshr_b32 s41, s{b}, 3")
    a("s_sub_u32 s41, 31, s41")
    a("s_cmp_ge_u32 s41, 20")
    a("s_cbranch_scc1 L_b23_done")
    a("s_lshl_b32 s44, s40, 2")
    a("s_and_b32 s45, s41, 3")
    a("s_add_u32 s44, s44, s45")
    a("s_lshr_b32 s45, s41, 2")
    gemm_setup_reads(a, 1)
    gemm_setup_dma(a, 1280, 1280)
    gemm_setup_gm(a, 8)
    srd(a, g.sA_srd, sWS, 216*GS8, H4_OFF)
    srd(a, g.sB0_srd, sWD, F*D*2)
    srd(a, g.sB1_srd, sWD, F*D*2)
    a(f"s_lshl_b32 s{g.sA}, s44, 10")
    a(f"s_lshl_b32 s{g.sB0}, s45, 8")
    rot_value(a, 46, 41, 5, 7, 27)
    rot_setup(a, 27, 8*GS8, 1280, 46)
    def split_prologue(ring, wait_fn):
        vm = VM()
        for q in (1, 3, 5): emit_groups(a, piece_groups(ring, q, 1280, 1280, SC), vm)
        wait_fn()
        vm.ops = []
        for q in (0, 2, 4): emit_groups(a, piece_groups(ring, q, 1280, 1280, SC), vm)
        return vm
    def wait_h():
        if MULTI: a("s_waitcnt vmcnt(0)"); return
        wait_ready(a)
        a("s_lshr_b32 s50, s44, 1")
        a(f"s_add_u32 s50, s50, {C_H}")
        wait_cnt(a, [50], 27, sleep=HSLEEP, wave0=True)
        a("s_waitcnt vmcnt(0)")
        a("s_barrier")
    vm = split_prologue(Ring(1, 27, 8), wait_h)
    stamp(a, 11)
    a(f"s_setprio {DPRIO}")
    gemm_main(a, 1, 27, True, 1280, 1280, scA=SC, gm=8, vm=vm, npro=6)
    a("s_setprio 2")
    stamp(a, 12)
    if os.environ.get("DNONLY"):
        a("s_branch L_b23_done")
    for r in range(0, 32, 4):
        for j in range(4):
            a(f"v_mul_f32 v{14+j}, {f32(-LOG2E)}, v{g.ACC+r+j}")
        for j in range(4):
            a(f"v_exp_f32 v{14+j}, v{14+j}")
        for j in range(4):
            a(f"v_add_f32 v{14+j}, 1.0, v{14+j}")
        for j in range(4):
            a(f"v_rcp_f32 v{14+j}, v{14+j}")
        a("s_nop 0")
        for j in range(4):
            a(f"v_mul_f32 v{128+r+j}, v{g.ACC+r+j}, v{14+j}")
    a("s_barrier")
    gemm_setup_gm(a, 4)
    srd(a, g.sA_srd, sWS, 160*GS, O4_OFF)
    srd(a, g.sB0_srd, sWO, D*D*2)
    srd(a, g.sB1_srd, sWO, D*D*2)
    a(f"s_lshl_b32 s{g.sA}, s44, 9")
    a(f"s_lshl_b32 s{g.sB0}, s45, 8")
    rot_value(a, 46, 41, 2, 3, 10)
    rot_setup(a, 10, 16*GS, 1280, 46)
    srd(a, 16, sX, S*D*2)
    a("s_lshl_b32 s51, s44, 6")
    a(f"s_lshl_b32 s52, s{g.sWm}, 5")
    a("s_add_u32 s51, s51, s52")
    a("v_and_b32 v160, 31, v1")
    a("v_add_u32 v160, s51, v160")
    a("v_mul_u32_u24 v160, 1280, v160")
    a("s_lshl_b32 s52, s45, 8")
    a(f"s_lshl_b32 s53, s{g.sWn}, 6")
    a("s_add_u32 s52, s52, s53")
    a("v_lshrrev_b32 v161, 5, v1")
    a("v_lshlrev_b32 v161, 3, v161")
    a("v_add3_u32 v160, v160, v161, s52")
    for v in range(2):
        for aa in range(4):
            a(f"buffer_load_dwordx2 v[{162+2*(4*v+aa)}:{163+2*(4*v+aa)}], v160, s[16:19], 0 offen offset:{128*v+16*aa}")
    def wait_o():
        if MULTI: a("s_waitcnt vmcnt(0)"); return
        a(f"s_add_u32 s50, s40, {C_O}")
        wait_cnt(a, [50], 32, sleep=OSLEEP, wave0=True)
        a("s_waitcnt vmcnt(0)")
        a("s_barrier")
    vm = split_prologue(Ring(1, 10, 4), wait_o)
    stamp(a, 13)
    gemm_main(a, 1, 10, True, 1280, 1280, scA=SC, gm=4, vm=vm, npro=6)
    srd(a, 16, sOUT, S*D*2)
    k = 0
    for v in range(2):
        for aa in range(4):
            xr = 162 + 2*(4*v+aa)
            acc = g.ACC + 16*v + 4*aa
            gg = 128 + 16*v + 4*aa
            t0 = 14 + 6*(k & 1); k += 1
            a(f"v_lshlrev_b32 v{t0}, 16, v{xr}")
            a(f"v_and_b32 v{t0+1}, 0xffff0000, v{xr}")
            a(f"v_lshlrev_b32 v{t0+2}, 16, v{xr+1}")
            a(f"v_and_b32 v{t0+3}, 0xffff0000, v{xr+1}")
            for b_ in range(4):
                a(f"v_fmac_f32 v{t0+b_}, v{acc+b_}, v{gg+b_}")
            a(f"v_cvt_pk_bf16_f32 v{t0+4}, v{t0}, v{t0+1}")
            a(f"v_cvt_pk_bf16_f32 v{t0+5}, v{t0+2}, v{t0+3}")
            a(f"buffer_store_dwordx2 v[{t0+4}:{t0+5}], v160, s[16:19], 0 offen offset:{128*v+16*aa}")
    a("L_b23_done:")

def build():
    hdr = open("cdna_kernels/" + NAME + ".s.ref").read().split("; Override launch geometry")[0]
    out = hdr
    LDS = 81920
    kernels = []
    if MULTI:
        def b0(a): phase_B0(a)
        def gu0(a): phase_GU(a, 0, 1, 0, 0); a("s_waitcnt vmcnt(0)")
        def gu1(a): phase_GU(a, 1, 1, 0, 0); a("s_waitcnt vmcnt(0)")
        PAIR = os.environ.get("PAIR", "")
        seq = (("b0", b0), ("a1", phase_A1), ("gu0", gu0), ("gu1", gu1), ("a2", phase_A2), ("b23", phase_B23))
        if PAIR: seq = seq[:4]
        for nm, fn in seq:
            a = Asm(); a.uid = 1000*len(kernels)
            k = nm + "_kernel"
            a(f"{k}:")
            a("s_cmp_ge_u32 s2, 256")
            a(f"s_cbranch_scc1 L_{nm}_exit")
            a(f"s_mov_b32 s{sIDX}, s2")
            stamp(a, 0)
            prologue(a)
            fn(a)
            if nm in os.environ.get("PROFK", "").split(","):
                stamp_flush(a, 14, G.sW)
            a(f"L_{nm}_exit:")
            a("s_endpgm")
            kernels.append((k, a.text()))
            out += f"; @launch kernel={k} grid=(256,1,1) block=(256,1,1) lds={LDS}\n"
        if PAIR:
            a = Asm(); a.uid = 9000
            k = "pair_kernel"
            a(f"{k}:")
            a("s_cmp_ge_u32 s2, 512")
            a("s_cbranch_scc1 L_pair_exit")
            stamp(a, 0)
            prologue(a)
            a("s_cmp_ge_u32 s2, 256")
            a("s_cbranch_scc1 L_pairB")
            a(f"s_mov_b32 s{sIDX}, s2")
            a(f"s_setprio {APRIO}")
            phase_A2(a)
            stamp_flush(a, 14, G.sW)
            a("s_endpgm")
            a("L_pairB:")
            a(f"s_sub_u32 s{sIDX}, s2, 256")
            a("s_setprio 2")
            if PAIR == "dn": phase_B23(a)
            if PAIR == "gu":
                phase_GU(a, 0, 3, BPRIO, 2); a("s_waitcnt vmcnt(0)"); a("s_barrier")
                phase_GU(a, 1, 7, BPRIO, 2); a("s_waitcnt vmcnt(0)")
            stamp_flush(a, 14, G.sW)
            a("L_pair_exit:")
            a("s_endpgm")
            kernels.append((k, a.text()))
            out += f"; @launch kernel={k} grid=(512,1,1) block=(256,1,1) lds={LDS}\n"
    else:
        a = Asm()
        k = NAME + "_kernel"
        a(f"{k}:")
        a("s_cmp_ge_u32 s2, 512")
        a("s_cbranch_scc1 L_exit")
        stamp(a, 0)
        prologue(a, defer=True)
        a("s_cmp_ge_u32 s2, 256")
        a("s_cbranch_scc1 L_roleB")
        a(f"s_mov_b32 s{sIDX}, s2")
        a(f"s_setprio {APRIO}")
        phase_A1(a, deferred=True)
        if A_GU:
            a("s_barrier")
            phase_GU(a, 0, 8, 1, 1, first_cb=late_signal(79, 8), kvpoll=True)
        phase_A2(a)
        stamp_flush(a, 14, G.sW)
        a("s_endpgm")
        a("L_roleB:")
        a(f"s_sub_u32 s{sIDX}, s2, 256")
        a("s_setprio 2")
        prologue_wait(a)
        zero_counters(a)
        EARLY = int(os.environ.get("EARLY", "0"))
        if not EARLY:
            phase_B0(a)
        stamp(a, 1)
        if os.environ.get("SKIPB"):
            stamp_flush(a, 14, G.sW)
            a("s_endpgm")
        if int(os.environ.get("GATE", "1")):
            a(f"s_add_u32 s50, s{sIDX}, {C_A1}")
            wait_cnt(a, [50], 1, sleep=8, wave0=True)
        a("s_barrier")
        if int(os.environ.get("WARM", "1")) == 2:
            a(f"s_cmp_lt_u32 s{G.sW}, 2")
            a("s_cbranch_scc1 L_nowarm")
            warm_code(a)
            a("s_waitcnt vmcnt(0)")
            a("L_nowarm:")
            a("s_barrier")
        stamp(a, 2)
        def gu_signal():
            a("s_lshl_b32 s30, s35, 7")
            a("v_mov_b32 v14, s30")
            signal(a, G.sW, 14, 15, 30, 1)
            a("s_barrier")
        if not A_GU:
            phase_GU(a, 0, 3, BPRIO, 2, mid=(phase_B0 if EARLY else None))
            gu_signal()
        a("s_mov_b32 s35, 0x100000")
        phase_GU(a, 1, 7, BPRIO, 2, mid=(phase_B0 if (EARLY and A_GU) else None))
        gu_signal()
        phase_B23(a)
        stamp_flush(a, 14, G.sW)
        a("L_exit:")
        a("s_endpgm")
        kernels.append((k, a.text()))
        out += f"; @launch grid=(512,1,1) block=(256,1,1) lds={LDS}\n"
    out += '.amdgcn_target "amdgcn-amd-amdhsa--gfx950"\n.text\n'
    descs = ""
    for k, txt in kernels:
        out += f".globl {k}\n.p2align 8\n.type {k},@function\n" + txt
        descs += kernel_desc(k, 256)
    out += '.section .rodata,"a"\n' + descs
    return out

if __name__ == "__main__":
    path = sys.argv[1] if len(sys.argv) > 1 else "cdna_kernels/" + NAME + ".s"
    open(path, "w").write(build())
    print("wrote", path)
```
